```python
import torch

def _softmax(x, axis=-1):
    return torch.softmax(x, dim=axis)
def _gelu(x):
    return torch.nn.functional.gelu(x, approximate="tanh")
def _silu(x):
    return torch.nn.functional.silu(x)
def _sigmoid(x):
    return torch.sigmoid(x)
def _layernorm(x, axis=-1, eps=1e-5):
    m = x.mean(dim=axis, keepdim=True)
    v = x.var(dim=axis, keepdim=True, unbiased=False)
    return (x - m) / torch.sqrt(v + eps)
def _scatter_add(tgt, idx, src, axis=0):
    return tgt.clone().index_add_(axis, idx, src)
def _segment_sum(src, seg, n):
    out = torch.zeros((n,) + src.shape[1:], dtype=src.dtype)
    return out.index_add_(0, seg, src)
def _pad(x, pw):
    flat = tuple(v for pair in reversed(pw) for v in pair)
    return torch.nn.functional.pad(x, flat)

kernel_name = 'parallel_sum__compressed_kv_cla__dense_activation_silu__prompt'

def setup_inputs():

    _w = (lambda a: (lambda t: t.to(torch.bfloat16) if t.is_floating_point() else t)(torch.as_tensor(a)))
    def _A_setup():
        B, H, Sq, Sk, D, M = 1, 32, 2048, 2048, 128, 640
        Dc = 4 * D
        return {
            "x": _w((lambda *s: torch.randn(*s, dtype=torch.bfloat16) * 0.05)(B, Sq, M)),
            "c_kv": _w((lambda *s: torch.randn(*s, dtype=torch.bfloat16) * 0.4)(B, Sk, Dc)),
            "w_q": _w((lambda *s: torch.randn(*s, dtype=torch.bfloat16) * 3.2)(M, H, D) * (M ** -0.5)),
            "w_uk": _w((lambda *s: torch.randn(*s, dtype=torch.bfloat16) * 3.2)(Dc, H, D) * (Dc ** -0.5)),
            "w_uv": _w((lambda *s: torch.randn(*s, dtype=torch.bfloat16) * 0.4)(Dc, H, D) * (Dc ** -0.5)),
            "w_o": _w((lambda *s: torch.randn(*s, dtype=torch.bfloat16) * 0.4)(H, D, M) * ((H * D) ** -0.5)),
        }
    _A_in = _A_setup()

    def _B_setup():
        B, S, D, F = 1, 2048, 640, 1728
        return {
            "x": _w((lambda *s: torch.randn(*s, dtype=torch.bfloat16) * 0.05)(B, S, D)),
            "w1": _w((lambda *s: torch.randn(*s, dtype=torch.bfloat16) * 0.8)(D, F) * (D ** -0.5)),
            "w2": _w((lambda *s: torch.randn(*s, dtype=torch.bfloat16) * 0.1)(F, D) * (F ** -0.5)),
        }
    _B_in = _B_setup()

    return {
        "A_x": _A_in["x"],
        "A_c_kv": _A_in["c_kv"],
        "A_w_q": _A_in["w_q"],
        "A_w_uk": _A_in["w_uk"],
        "A_w_uv": _A_in["w_uv"],
        "A_w_o": _A_in["w_o"],
        "B_x": _B_in["x"],
        "B_w1": _B_in["w1"],
        "B_w2": _B_in["w2"],
    }

def reference(A_x, A_c_kv, A_w_q, A_w_uk, A_w_uv, A_w_o, B_x, B_w1, B_w2):
    def _A_ref(x, c_kv, w_q, w_uk, w_uv, w_o):
        B, Sq, M = x.shape[0], x.shape[1], x.shape[2]
        Sk = c_kv.shape[1]
        H, D = w_q.shape[1], w_q.shape[2]
        q = torch.einsum("bqm,mhd->bhqd", x, w_q)
        k = torch.einsum("bkc,chd->bhkd", c_kv, w_uk)
        v = torch.einsum("bkc,chd->bhkd", c_kv, w_uv)
        scores = torch.einsum("bhqd,bhkd->bhqk", q, k) * (D ** -0.5)
        off = Sk - Sq
        qi = torch.arange(Sq)[:, None]
        kj = torch.arange(Sk)[None, :]
        cmask = kj <= (qi + off)
        scores = torch.where(cmask[None, None], scores, -1e9)
        p = _softmax(scores, axis=-1)
        ctx = torch.einsum("bhqk,bhkd->bhqd", p, v)
        return torch.einsum("bhqd,hdm->bqm", ctx, w_o)

    def _B_ref(x, w1, w2):
        h = torch.einsum("bsd,df->bsf", x, w1)
        h = _silu(h)
        out = torch.einsum("bsf,fd->bsd", h, w2)
        return out

    x = A_x
    xn = _layernorm(x, axis=-1)
    return x + _A_ref(xn, A_c_kv, A_w_q, A_w_uk, A_w_uv, A_w_o) + _B_ref(xn, B_w1, B_w2)
```

```python
import re

REG_RE = re.compile(r"^(-|\|)?(abs\()?([vas])(?:(\d+)|\[(\d+):(\d+)\])\)?\|?$")
TRANS = ("v_exp_f32", "v_log_f32", "v_rcp_f32", "v_rsq_f32", "v_sqrt_f32", "v_sin_f32", "v_cos_f32")


def regs_of(op):
    op = op.strip()
    if op in ("vcc", "exec", "m0", "scc"):
        return [op]
    if op in ("vcc_lo", "vcc_hi"):
        return ["vcc"]
    m = REG_RE.match(op)
    if not m:
        return []
    k = m.group(3)
    if m.group(4) is not None:
        return [k + m.group(4)]
    return [k + str(i) for i in range(int(m.group(5)), int(m.group(6)) + 1)]


def split_ops(s):
    out, depth, cur = [], 0, ""
    for ch in s:
        if ch in "[(":
            depth += 1
        if ch in "])":
            depth -= 1
        if ch == "," and depth == 0:
            out.append(cur.strip())
            cur = ""
        else:
            cur += ch
    if cur.strip():
        out.append(cur.strip())
    return out


class Ins:
    def __init__(self, text, tok_w=(), tok_r=()):
        self.text = text
        self.tok_w = tuple(tok_w)
        self.tok_r = tuple(tok_r)
        self.w, self.r = [], []
        self.aw = []
        self.cnt = None
        self.target = None
        self.mn = ""
        t = text.split(";")[0].strip()
        if t == "":
            self.kind = "need" if tok_r else "dir"
            return
        if t.endswith(":"):
            self.kind = "label"
            self.name = t[:-1]
            return
        if t.startswith("."):
            self.kind = "dir"
            return
        p = t.split(None, 1)
        mn = p[0]
        self.mn = mn
        rest = p[1] if len(p) > 1 else ""
        ops = split_ops(rest)
        mods = ""
        if ops:
            q = ops[-1].split(None, 1)
            if len(q) > 1 and not ops[-1].startswith("hwreg"):
                ops[-1], mods = q[0], q[1]
        self.ops, self.mods = ops, mods
        R = lambda i: regs_of(ops[i]) if i < len(ops) else []
        base = mn.replace("_e32", "").replace("_e64", "")
        if mn.startswith("v_mfma"):
            self.kind = "mfma"
            self.w = R(0)
            self.ab = R(1) + R(2)
            self.c = R(3)
            self.r = self.ab + self.c
            self.passes = 8 if "32x32" in mn else 4
        elif mn.startswith("v_"):
            self.kind = "trans" if base in TRANS else "valu"
            self.w = R(0)
            self.r = [x for i in range(1, len(ops)) for x in R(i)]
            if base.startswith("v_permlane") and "swap" in base:
                self.w = R(0) + R(1)
                self.r = R(0) + R(1)
            if base in ("v_fmac_f32", "v_dot2c_f32_bf16", "v_writelane_b32"):
                self.r += R(0)
            if base in ("v_add_co_u32", "v_addc_co_u32", "v_sub_co_u32"):
                self.w = R(0) + R(1)
                self.r = [x for i in range(2, len(ops)) for x in R(i)]
            if "dpp" in mn or "row_" in mods or "quad_perm" in mods:
                self.dpp = True
                self.r += R(0)
        elif mn.startswith("ds_"):
            self.kind = "ds"
            self.cnt = "lgkm"
            if mn.startswith("ds_read") or "permute" in mn or "swizzle" in mn:
                self.aw = R(0)
                self.r = [x for i in range(1, len(ops)) for x in R(i)]
            else:
                self.r = [x for i in range(len(ops)) for x in R(i)]
        elif mn.startswith("buffer_") or mn.startswith("global_"):
            self.kind = "vmem"
            self.cnt = "vm"
            allr = lambda a: [x for i in range(a, len(ops)) for x in R(i)]
            if mn in ("buffer_inv", "buffer_wbl2"):
                pass
            elif "load" in mn and (" lds" in " " + mods or "_lds_" in mn):
                self.r = allr(0) + ["m0"]
                self.dma = True
            elif "load" in mn:
                self.aw = R(0)
                self.r = allr(1)
            elif "atomic" in mn and "sc0" in mods:
                self.aw = R(0)
                self.r = allr(0)
            else:
                self.r = allr(0)
                if "store" in mn and ("x4" in mn or "x3" in mn):
                    self.stdata = R(0) if mn.startswith("buffer") else R(1)
        elif mn.startswith("s_load") or mn in ("s_memtime", "s_memrealtime"):
            self.kind = "smem"
            self.cnt = "lgkm"
            self.aw = R(0)
            self.r = [x for i in range(1, len(ops)) for x in R(i)]
        elif mn == "s_waitcnt":
            self.kind = "wait"
            self.vm = self.lgkm = None
            m = re.search(r"vmcnt\((\d+)\)", rest)
            if m:
                self.vm = int(m.group(1))
            m = re.search(r"lgkmcnt\((\d+)\)", rest)
            if m:
                self.lgkm = int(m.group(1))
        elif mn.startswith("s_cbranch") or mn == "s_branch":
            self.kind = "branch"
            self.target = ops[0]
            if "vcc" in mn:
                self.r = ["vcc"]
            if "exec" in mn:
                self.r = ["exec"]
        elif mn == "s_endpgm":
            self.kind = "end"
        elif mn.startswith("s_"):
            self.kind = "salu"
            if mn.startswith("s_cmp") or mn in ("s_nop", "s_barrier", "s_sleep", "s_setprio"):
                self.r = [x for i in range(len(ops)) for x in R(i)]
            else:
                self.w = R(0)
                self.r = [x for i in range(1, len(ops)) for x in R(i)]
                if "saveexec" in mn:
                    self.w += ["exec"]
        else:
            raise ValueError("cannot parse: " + text)

    def states(self):
        if self.kind in ("label", "dir", "need"):
            return 0
        if self.mn == "s_nop":
            return int(self.ops[0], 0) + 1
        return 1


class Asm:
    def __init__(self):
        self.ins = []

    def __call__(self, text, tok_w=(), tok_r=()):
        lines = text.split("\n")
        for ln in lines:
            if ln.strip():
                self.ins.append(Ins(ln.strip(), tok_w, tok_r))

    def need(self, *toks):
        self.ins.append(Ins("", tok_r=toks))

    def add(self, ins):
        self.ins.append(ins)

    def text(self):
        out = []
        for i in self.ins:
            if i.kind == "need":
                continue
            if i.kind == "label" or i.kind == "dir":
                out.append(i.text)
            else:
                out.append("  " + i.text)
        return "\n".join(out) + "\n"


def cfg(ins):
    lab = {i.name: n for n, i in enumerate(ins) if i.kind == "label"}
    succ = []
    for n, i in enumerate(ins):
        s = []
        if i.kind == "end":
            pass
        elif i.kind == "branch":
            s.append(lab[i.target])
            if i.mn != "s_branch":
                s.append(n + 1)
        elif n + 1 < len(ins):
            s.append(n + 1)
        succ.append(s)
    pred = [[] for _ in ins]
    for n, s in enumerate(succ):
        for m in s:
            pred[m].append(n)
    return succ, pred


MAXC = {"vm": 63, "lgkm": 15}


def _step(s, i):
    if i.kind == "wait":
        for key in list(s):
            lim = i.vm if key[0] == "vm" else i.lgkm
            if lim is not None and s[key] >= lim:
                del s[key]
    if i.cnt:
        c = i.cnt
        for key in s:
            if key[0] == c:
                s[key] = min(s[key] + 1, 99)
        if i.kind == "smem":
            for key in s:
                if key[0] == c:
                    s[key] = 0
            s[(c, "@smem")] = 0
        elif (c, "@smem") in s:
            for key in s:
                if key[0] == c:
                    s[key] = 0
        for r in list(i.aw) + list(i.tok_w):
            s[(c, r)] = 0


def _blocks(ins):
    bl, cur = [], []
    for i in ins:
        if i.kind == "label" and cur:
            bl.append(cur)
            cur = []
        cur.append(i)
        if i.kind in ("branch", "end"):
            bl.append(cur)
            cur = []
    if cur:
        bl.append(cur)
    lab = {b[0].name: n for n, b in enumerate(bl) if b[0].kind == "label"}
    succ = []
    for n, b in enumerate(bl):
        e = b[-1]
        s = []
        if e.kind == "branch":
            s.append(lab[e.target])
            if e.mn != "s_branch":
                s.append(n + 1)
        elif e.kind != "end" and n + 1 < len(bl):
            s.append(n + 1)
        succ.append(s)
    return bl, succ


def _flow(bl, succ):
    st = [None] * len(bl)
    st[0] = {}
    work = [0]
    while work:
        k = work.pop()
        s = dict(st[k])
        for i in bl[k]:
            _step(s, i)
        for m in succ[k]:
            if st[m] is None:
                st[m] = dict(s)
                work.append(m)
            else:
                ch = False
                for key, v in s.items():
                    if key not in st[m] or st[m][key] > v:
                        st[m][key] = v
                        ch = True
                if ch:
                    work.append(m)
    return st


def _fix_block(b, s0, hoist):
    s = dict(s0)
    for k, i in enumerate(b):
        touched = set(i.r) | set(i.w) | set(i.tok_r) | set(i.aw)
        need = {}
        for (c, r), v in s.items():
            if r in touched:
                if r in i.aw and r not in i.r and i.cnt == c and i.kind != "smem":
                    continue
                need[c] = min(need.get(c, 99), v)
        if not need:
            _step(s, i)
            continue
        pos = k
        if hoist and i.kind == "mfma":
            j = k - 1
            cntd = {"vm": 0, "lgkm": 0}
            ok = True
            while j >= 0 and b[j].kind in ("valu", "trans", "ds", "vmem", "salu", "wait", "need") and k - j <= 5:
                if b[j].mn == "s_barrier":
                    ok = False
                    break
                if b[j].cnt:
                    cntd[b[j].cnt] += 1
                j -= 1
            if ok and j >= 0 and b[j].kind == "mfma" and all(need[c] - cntd[c] >= 0 for c in need):
                need = {c: need[c] - cntd[c] for c in need}
                pos = j + 1
        parts = {c: min(v, MAXC[c]) for c, v in need.items()}
        for p in (pos, pos - 1):
            if 0 <= p < len(b) and b[p].kind == "wait":
                o = b[p]
                if o.vm is not None:
                    parts["vm"] = min(parts.get("vm", 99), o.vm)
                if o.lgkm is not None:
                    parts["lgkm"] = min(parts.get("lgkm", 99), o.lgkm)
                del b[p]
                pos = p
                break
        t = "s_waitcnt" + (" vmcnt(%d)" % parts["vm"] if "vm" in parts else "") + (
            " lgkmcnt(%d)" % parts["lgkm"] if "lgkm" in parts else "")
        b.insert(pos, Ins(t))
        return True
    return False


def insert_waits(asm, hoist=True):
    bl, succ = _blocks(asm.ins)
    changed = True
    while changed:
        changed = False
        for k in range(len(bl)):
            st = _flow(bl, succ)
            if st[k] is None:
                continue
            selfloop = k in succ[k]
            while _fix_block(bl[k], st[k], hoist):
                changed = True
                if selfloop:
                    st = _flow(bl, succ)
    asm.ins = [i for b in bl for i in b]


def _need_states(p, c):
    n = 0
    pv = p.kind in ("valu", "trans")
    cv = c.kind in ("valu", "trans")
    pw = set(p.w)
    if pv:
        vw = {x for x in pw if x[0] in "va" and x != "vcc"}
        sw = {x for x in pw if x[0] == "s" or x == "vcc"}
        if c.kind == "mfma" and vw & set(c.r):
            n = max(n, 2)
        if cv and c.mn.startswith("v_permlane") and vw & set(c.r):
            n = max(n, 2)
        if cv and getattr(c, "dpp", False) and vw & set(c.r):
            n = max(n, 2)
        if cv and (c.mn.startswith("v_readfirstlane") or c.mn.startswith("v_readlane")) and vw & set(c.r):
            n = max(n, 1)
        if cv and sw & set(c.r):
            n = max(n, 4 if c.mn.startswith("v_readlane") or c.mn.startswith("v_writelane") else 2)
        if c.kind == "vmem" and sw & set(c.r):
            n = max(n, 5)
        if c.kind in ("salu", "branch", "smem") and sw & set(c.r):
            n = max(n, 1)
        if c.kind == "branch" and "vcc" in sw and "vcc" in c.r:
            n = max(n, 5)
        if p.kind == "trans" and c.kind == "valu" and vw & set(c.r):
            n = max(n, 1)
        if p.mn.startswith("v_dot") and c.mn != p.mn and vw & (set(c.r) | set(c.w)):
            n = max(n, 3)
    if p.kind == "mfma":
        full = 8 if p.passes == 4 else 12
        part = 6 if p.passes == 4 else 10
        war = 3 if p.passes == 4 else 7
        if c.kind == "mfma":
            if pw & set(c.ab):
                n = max(n, full)
            if pw & set(c.c) and (p.w != c.c or p.passes != c.passes):
                n = max(n, part)
            if pw & set(c.w) and p.w != c.c:
                n = max(n, part)
        elif cv:
            if pw & (set(c.r) | set(c.w)):
                n = max(n, full)
            if set(p.c) & set(c.w):
                n = max(n, war)
        elif c.kind in ("ds", "vmem"):
            if pw & (set(c.r) | set(c.aw)):
                n = max(n, full)
            if set(p.c) & set(c.aw):
                n = max(n, war)
    if p.kind == "salu" and "m0" in pw and getattr(c, "dma", False):
        n = max(n, 1)
    if p.kind == "salu" and "m0" in pw and cv and "m0" in c.r:
        n = max(n, 1)
    sd = getattr(p, "stdata", None)
    if sd and set(sd) & (set(c.w) | set(c.aw)):
        n = max(n, 2)
    return n


def check_hazards(asm, fix=True):
    added = 0
    start = 0
    while True:
        ins = asm.ins
        succ, pred = cfg(ins)
        bad = None
        for k in range(start, len(ins)):
            c = ins[k]
            if c.kind in ("label", "dir", "need", "wait", "end"):
                continue
            stack = [(p, 0) for p in pred[k]]
            seen = {}
            short = 0
            while stack:
                j, d = stack.pop()
                if d >= 12 or seen.get(j, 99) <= d:
                    continue
                seen[j] = d
                p = ins[j]
                if p.kind not in ("label", "dir", "need", "wait", "branch"):
                    n = _need_states(p, c)
                    if n > d and n - d > short:
                        short = n - d
                        who = p
                for q in pred[j]:
                    stack.append((q, d + p.states()))
            if short:
                bad = (k, short, who)
                break
        if not bad:
            return added
        k, short, who = bad
        if not fix:
            raise RuntimeError("hazard: %s -> %s needs %d more" % (who.text, ins[k].text, short))
        ins.insert(k, Ins("s_nop %d ; hz: %s" % (short - 1, who.text.split(";")[0][:60])))
        added += 1
        start = k


COST = {"s": 0, "d": 1, "v": 1, "t": 2, "m": 2}


class Item:
    def __init__(self, ins, lo, hi, after=(), dist=0):
        self.ins = ins if isinstance(ins, list) else [ins]
        self.lo, self.hi = lo, hi
        self.after = [a for a in after if a is not None]
        self.dist = dist
        self.gap = None
        k = self.ins[-1].kind
        self.cls = {"salu": "s", "wait": "s", "need": "s", "branch": "s", "ds": "d", "valu": "v", "trans": "t",
                    "vmem": "m"}[k]


class Stream:
    def __init__(self):
        self.m = []
        self.items = []

    def mfma(self, text):
        self.m.append(Ins(text))
        return len(self.m) - 1

    def put(self, text, lo, hi=None, after=(), dist=0, tok_w=(), tok_r=(), pre=None):
        if hi is None:
            hi = lo
        main = Ins(text, tok_w, tok_r)
        ins = ([Ins(t) for t in pre.split("\n")] if pre else []) + [main]
        it = Item(ins, lo, hi, after if isinstance(after, (list, tuple)) else [after], dist)
        self.items.append(it)
        return it

    def emit(self, asm):
        n = len(self.m)
        gaps = {g: [] for g in range(-1, n)}
        todo = list(self.items)
        order = {id(it): k for k, it in enumerate(todo)}
        over = 0
        for g in range(-1, n):
            cap, scal = 2, 1
            while True:
                cand = [it for it in todo if it.lo <= g and all(
                    a.gap is not None and a.gap + it.dist <= g for a in it.after)]
                if not cand:
                    break
                cand.sort(key=lambda it: (it.hi, order[id(it)]))
                pick = None
                for it in cand:
                    forced = it.hi <= g or g == n - 1
                    ns = len(it.ins) - 1 + (1 if it.cls == "s" and it.ins[-1].kind != "need" else 0)
                    c = COST[it.cls] + max(0, ns - scal)
                    dep_same = any(a.gap == g and a.cls in "vt" for a in it.after) and it.cls in "dm"
                    if (c <= cap and not dep_same and g >= 0) or forced:
                        pick = (it, c, ns)
                        break
                if not pick:
                    break
                it, c, ns = pick
                it.gap = g
                gaps[g].append(it)
                todo.remove(it)
                scal = max(0, scal - ns)
                cap -= c
            if cap < 0 and g >= 0:
                over += -cap
        assert not todo, [it.ins[-1].text for it in todo]
        rank = {"s": 0, "m": 1, "d": 1, "v": 2, "t": 2}
        for g in range(-1, n):
            if g >= 0:
                asm.add(self.m[g])
            its = gaps[g]
            done, out = set(), []
            pend = sorted(its, key=lambda it: (rank[it.cls], its.index(it)))
            while pend:
                for it in pend:
                    if all(a.gap != g or id(a) in done for a in it.after):
                        out.append(it)
                        done.add(id(it))
                        pend.remove(it)
                        break
                else:
                    raise RuntimeError("cyclic order in gap")
            for it in out:
                for i in it.ins:
                    asm.add(i)
        return over


_NO_SCC = ("s_mov_b32", "s_mov_b64", "s_cselect_b32", "s_cselect_b64", "s_mul_i32", "s_mul_hi_u32", "s_nop", "s_barrier",
           "s_sleep", "s_setprio", "s_getreg_b32", "s_movk_i32", "s_getpc_b64")


def check_scc(asm):
    ins = asm.ins
    succ, pred = cfg(ins)
    for k, c in enumerate(ins):
        if not (c.mn.startswith("s_cselect") or c.mn.startswith("s_cbranch_scc") or c.mn == "s_addc_u32"):
            continue
        stack, seen = list(pred[k]), set()
        while stack:
            j = stack.pop()
            if j in seen:
                continue
            seen.add(j)
            p = ins[j]
            if p.kind == "salu" and p.mn not in _NO_SCC:
                ok = p.mn.startswith("s_cmp") or (c.mn == "s_addc_u32" and p.mn == "s_add_u32") or ";scc" in p.text
                if not ok:
                    raise RuntimeError("SCC clobber: %s before %s" % (p.text, c.text))
                continue
            stack += pred[j]
```

```python
import sys
from asmlib import *

NAME = "parallel_sum__compressed_kv_cla__dense_activation_silu__prompt"

WS_CNT = 0
WS_XN = 0x10000
WS_KV = 0x400000
WS_A = 0x2400000
WS_EX = 0x3C00000
WS_SIZE = 0x10000000
A_RB = 184 * 1024

MF = "v_mfma_f32_16x16x32_bf16"

S_WG, S_W, S_H, S_I, S_J, S_HL = "s2", "s3", "s4", "s5", "s6", "s7"
SRD_WS = 8
SRD_A = 12
SRD_B = 16
SRD_C = 20
SRD_D = 24
PTR = 64


def srd(a, n, ptr, nbytes):
    a(f"s_mov_b32 s{n}, s{PTR + 2 * ptr}")
    a(f"s_and_b32 s{n + 1}, s{PTR + 2 * ptr + 1}, 0xffff")
    a(f"s_mov_b32 s{n + 2}, {nbytes}")
    a(f"s_mov_b32 s{n + 3}, 0x20000")


def S(n):
    return f"s[{n}:{n + 3}]"


def vr(kind, n, w=4):
    return f"{kind}[{n}:{n + w - 1}]"


def prologue(a, name):
    a(f".globl {name}\n.p2align 8\n.type {name},@function\n{name}:")
    a(f"s_cmp_ge_u32 s2, 256")
    a(f"s_cbranch_scc1 L_end_{name}")
    a(f"s_load_dwordx16 s[{PTR}:{PTR + 15}], s[0:1], 0")
    a(f"s_load_dwordx8 s[{PTR + 16}:{PTR + 23}], s[0:1], 64")
    a("v_lshrrev_b32 v1, 6, v0")
    a("s_and_b32 s28, s2, 7")
    a(f"s_lshr_b32 {S_J}, s28, 1")
    a("v_readfirstlane_b32 s3, v1")
    a("s_and_b32 s28, s28, 1")
    a("s_lshr_b32 s29, s2, 3")
    a(f"s_and_b32 {S_HL}, s29, 7")
    a("s_lshr_b32 s29, s29, 3")
    a(f"s_lshl_b32 {S_H}, {S_J}, 3")
    a(f"s_add_u32 {S_H}, {S_H}, {S_HL}")
    a("s_and_b32 s30, s29, 1")
    a("s_xor_b32 s30, s30, s28")
    a(f"s_lshl_b32 {S_I}, s29, 1")
    a(f"s_add_u32 {S_I}, {S_I}, s30")
    a("v_and_b32 v1, 63, v0")
    a("v_lshlrev_b32 v1, 4, v1")
    if DIAG:
        a("v_mov_b32 v15, 0")
    stamp(a, 0)


WS_DIAG = 0xF000000
DIAG = False


def stamp(a, k):
    if not DIAG:
        return
    a("s_memrealtime s[98:99]\ns_memtime s[100:101]\ns_waitcnt lgkmcnt(0)")
    a(f"v_writelane_b32 v15, s98, {k}\nv_writelane_b32 v15, s100, {32 + k}")


def stamp_dump(a, idx):
    if not DIAG:
        return
    a("s_waitcnt vmcnt(0)")
    stamp(a, 31)
    a(f"s_lshl_b32 s98, {S_WG}, 2\ns_add_u32 s98, s98, {S_W}\ns_lshl_b32 s98, s98, 8")
    a(f"s_add_u32 s98, s98, {WS_DIAG + idx * 0x40000}")
    a("v_lshrrev_b32 v14, 2, v1")
    a(f"buffer_store_dword v15, v14, {S(SRD_WS)}, s98 offen")


def after_ptrs(a):
    srd(a, SRD_WS, 11, WS_SIZE)


def ending(a, name, vg=512, acc=256):
    a(f"L_end_{name}:")
    a("s_endpgm")
    return f"""
.section .rodata,"a"
.p2align 6
.amdhsa_kernel {name}
  .amdhsa_next_free_vgpr {vg}
  .amdhsa_next_free_sgpr 102
  .amdhsa_accum_offset {acc}
  .amdhsa_group_segment_fixed_size 0
  .amdhsa_kernarg_size 96
  .amdhsa_user_sgpr_count 2
  .amdhsa_user_sgpr_kernarg_segment_ptr 1
  .amdhsa_system_sgpr_workgroup_id_x 1
.end_amdhsa_kernel
.text
"""


P1_C0 = 0
P1_W0 = 65536
P1_WM = 16896
P1_WS = 2 * P1_WM


def p1_acc(vwave, j, i):
    m, half = ((j * 4 + (i >> 1)), i & 1) if vwave else (((j >> 1) * 8 + i), j & 1)
    if m < 30:
        return "v", 16 + 8 * m + 4 * half
    return "a", 80 + 8 * (m - 30) + 4 * half


def p1_frag(vwave, m):
    return ((m & 3) * 8 + (m >> 2)) if vwave else ((m & 7) * 4 + (m >> 3))


def phase1_start(a, ST):
    srd(a, SRD_A, 1, 2097152)
    srd(a, SRD_B, 3, 4194304)
    srd(a, SRD_C, 4, 4194304)
    srd(a, SRD_D, 0, 2621440)
    a("v_and_b32 v7, 7, v0")
    a("v_bfe_u32 v8, v0, 3, 3")
    a("v_mul_u32_u24 v9, 0x500, v7")
    a("v_lshl_add_u32 v9, v8, 4, v9")
    a("v_lshlrev_b32 v10, 4, v7")
    a("v_lshl_add_u32 v10, v8, 8, v10")
    a(f"s_mul_i32 s28, {S_W}, 3")
    a(f"s_mul_i32 s29, {S_WG}, 10240")
    for s in range(10):
        a(f"s_add_u32 s30, s28, {s}")
        a("s_cmp_ge_u32 s30, 10")
        a("s_cselect_b32 s31, 10, 0")
        a("s_sub_u32 s30, s30, s31")
        if s < 3:
            a(f"s_lshl_b32 s{40 + s}, s30, 11")
        a("s_lshl_b32 s30, s30, 7")
        a("s_add_u32 s30, s30, s29")
        a(f"buffer_load_dwordx4 {vr('v', 16 + 4 * s)}, v9, {S(SRD_D)}, s30 offen")
    a("v_bfe_u32 v7, v0, 3, 3")
    a("v_and_b32 v8, 6, v7")
    a("v_and_b32 v11, 7, v0")
    a("v_xor_b32 v8, v8, v11")
    a("v_lshlrev_b32 v8, 4, v8")
    a("v_lshl_add_u32 v5, v7, 10, v8")
    a("v_bfe_u32 v7, v0, 4, 2")
    a("v_and_b32 v8, 15, v0")
    a("v_lshlrev_b32 v8, 4, v8")
    a("v_lshl_add_u32 v6, v7, 17, v8")
    a(f"s_lshl_b32 s32, {S_I}, 18")
    a(f"s_lshl_b32 s28, {S_W}, 16")
    a("s_add_u32 s32, s32, s28")
    a(f"s_and_b32 s28, {S_W}, 1")
    a("s_lshl_b32 s28, s28, 3")
    a(f"s_lshr_b32 s29, {S_W}, 1")
    a("s_lshl_b32 s29, s29, 2")
    a("s_add_u32 s28, s28, s29")
    a("s_lshl_b32 s33, s28, 13")
    a(f"s_lshl_b32 s28, {S_H}, 8")
    a("s_add_u32 s33, s33, s28")
    a(f"s_lshl_b32 s34, {S_W}, 13")
    a(f"s_mul_i32 s35, {S_W}, {4 * 1056}")
    a(f"s_add_u32 s35, s35, {P1_W0}")

    def cdma(slot, t):
        for pp in range(8):
            a(f"s_add_u32 m0, s34, {slot * 32768 + pp * 1024}")
            a(f"s_add_u32 s28, s32, {pp * 8192 + t * 128}")
            a(f"buffer_load_dwordx4 v5, {S(SRD_A)}, s28 offen lds", tok_w=["C%d" % t])

    cdma(0, 0)
    for mat in range(2):
        for e in range(4):
            a(f"s_add_u32 m0, s35, {mat * P1_WM + e * 1056}")
            a(f"s_add_u32 s28, s33, {e * 8192}")
            a(f"buffer_load_dwordx4 v6, {S(SRD_B + 4 * mat)}, s28 offen lds", tok_w=["W0"])
    cdma(1, 1)
    if ST.get("l2pf", True):
        a("v_lshlrev_b32 v7, 7, v0")
        a(f"s_lshl_b32 s28, {S_I}, 18")
        a(f"s_lshl_b32 s29, {S_HL}, 15")
        a("s_add_u32 s28, s28, s29")
        a(f"buffer_load_dword v12, v7, {S(SRD_A)}, s28 offen")
        a("v_lshrrev_b32 v7, 1, v0")
        a("v_and_b32 v8, 1, v0")
        a("v_lshlrev_b32 v8, 7, v8")
        a("v_lshl_add_u32 v7, v7, 13, v8")
        a(f"s_lshr_b32 s28, {S_I}, 1")
        a("s_lshl_b32 s28, s28, 20")
        a(f"s_lshl_b32 s29, {S_H}, 8")
        a("s_add_u32 s28, s28, s29")
        a(f"buffer_load_dword v13, v7, {S(SRD_B)}, s28 offen")
        a(f"buffer_load_dword v14, v7, {S(SRD_C)}, s28 offen")
    a(f"s_add_u32 s33, s33, {64 * 8192}")
    a(f"s_add_u32 s35, s35, {P1_WS}")
    a("s_add_u32 s32, s32, 256")
    a(f"s_mov_b32 s36, {-P1_WS & 0xffffffff}")
    a(f"s_mov_b32 s37, {P1_WS}")
    a("v_and_b32 v7, 15, v0")
    a("v_bfe_u32 v8, v0, 4, 2")
    a("v_and_b32 v11, 6, v7")
    a("v_xor_b32 v11, v11, v8")
    a("v_lshlrev_b32 v11, 4, v11")
    a("v_lshl_add_u32 v2, v7, 7, v11")
    a(f"s_and_b32 s28, {S_W}, 1")
    a("s_lshl_b32 s28, s28, 14")
    a("v_add_u32 v2, s28, v2")
    a("v_xor_b32 v3, 64, v2")
    a("v_bfe_u32 v7, v0, 2, 2")
    a("v_and_b32 v11, 1, v8")
    a("v_lshl_add_u32 v7, v11, 2, v7")
    a("v_mul_u32_u24 v7, 0x420, v7")
    a("v_lshrrev_b32 v11, 1, v8")
    a("v_lshl_add_u32 v7, v11, 8, v7")
    a("v_and_b32 v11, 3, v0")
    a("v_lshl_add_u32 v7, v11, 3, v7")
    a(f"s_lshr_b32 s28, {S_W}, 1")
    a(f"s_mul_i32 s28, s28, {P1_WM}")
    a(f"s_add_u32 s28, s28, {P1_W0}")
    a("v_add_u32 v4, s28, v7")
    a.need("v16")
    stamp(a, 1)
    a("s_mov_b32 s28, 0x3f803f80")
    a("v_mov_b32 v60, 0\nv_mov_b32 v61, 0\nv_mov_b32 v62, 0\nv_mov_b32 v63, 0")
    for k in range(40):
        a(f"v_dot2_f32_bf16 v{60 + (k & 1)}, v{16 + k}, s28, v{60 + (k & 1)}")
        a(f"v_dot2_f32_bf16 v{62 + (k & 1)}, v{16 + k}, v{16 + k}, v{62 + (k & 1)}")
    a("s_nop 2")
    a("v_add_f32 v60, v60, v61")
    a("v_add_f32 v62, v62, v63")
    a("v_add_f32_dpp v60, v60, v60 row_ror:8 row_mask:0xf bank_mask:0xf")
    a("v_add_f32_dpp v62, v62, v62 row_ror:8 row_mask:0xf bank_mask:0xf")
    for sw in ("v_permlane16_swap_b32", "v_permlane32_swap_b32"):
        a("v_mov_b32 v61, v60\nv_mov_b32 v63, v62")
        a(f"{sw} v60, v61\n{sw} v62, v63")
        a("v_add_f32 v60, v60, v61\nv_add_f32 v62, v62, v63")
    a("s_mov_b32 s28, 0x3acccccd")
    a("v_mul_f32 v60, s28, v60")
    a("v_mul_f32 v62, s28, v62")
    a("v_fma_f32 v62, -v60, v60, v62")
    a("v_max_f32 v62, 0, v62")
    a("v_cvt_pk_bf16_f32 v61, v60, v62")
    a("v_lshlrev_b32 v60, 16, v61")
    a("v_and_b32 v62, 0xffff0000, v61")
    a("v_add_f32 v62, 0x3727c5ac, v62")
    a("v_cvt_pk_bf16_f32 v62, v62, v62")
    a("v_and_b32 v62, 0xffff0000, v62")
    a("v_sqrt_f32 v62, v62")
    a("v_cvt_pk_bf16_f32 v62, v62, v62")
    a("v_and_b32 v62, 0xffff0000, v62")
    a("v_rcp_f32 v62, v62")
    a(f"s_lshr_b32 s28, {S_WG}, 1")
    a("s_mul_i32 s28, s28, 20480")
    a(f"s_and_b32 s29, {S_WG}, 1")
    a("s_lshl_b32 s29, s29, 7")
    a("s_add_u32 s28, s28, s29")
    a(f"s_add_u32 s28, s28, {WS_XN}")
    for s in range(3):
        for k in range(4):
            r = 16 + 4 * s + k
            a(f"v_lshlrev_b32 v64, 16, v{r}")
            a(f"v_and_b32 v65, 0xffff0000, v{r}")
            a("v_sub_f32 v64, v64, v60")
            a("v_sub_f32 v65, v65, v60")
            a("v_cvt_pk_bf16_f32 v64, v64, v65")
            a("v_and_b32 v65, 0xffff0000, v64")
            a("v_lshlrev_b32 v64, 16, v64")
            a("v_mul_f32 v64, v64, v62")
            a("v_mul_f32 v65, v65, v62")
            a(f"v_cvt_pk_bf16_f32 v{68 + 4 * s + k}, v64, v65")
        a(f"s_add_u32 s29, s28, s{40 + s}")
        a(f"buffer_store_dwordx4 {vr('v', 68 + 4 * s)}, v10, {S(SRD_WS)}, s29 offen sc1", tok_w=["XN"])
    for r in list(range(16, 68)) + list(range(80, 256)) + list(range(68, 80)):
        a(f"v_mov_b32 v{r}, 0")
    for r in range(80, 96):
        a(f"v_accvgpr_write_b32 a{r}, 0")
    stamp(a, 2)
    a.need("C0", "W0")
    a("s_barrier")
    stamp(a, 3)
    for ks in range(2):
        for hf in range(2):
            a(f"ds_read_b64_tr_b16 {vr('a', 64 + ks * 4 + hf * 2, 2)}, v4 offset:{hf * 8448 + ks * 512}")
    for i in range(6):
        for ks in range(2):
            a(f"ds_read_b128 {vr('a', i * 8 + ks * 4)}, v{2 + ks} offset:{i * 2048}")
    a("s_mov_b32 s38, 0")


def phase1_loop(a, vwave, tag):
    st = Stream()
    for j in range(8):
        for i in range(8):
            k, r = p1_acc(vwave, j, i)
            for ks in range(2):
                w = vr("a", 64 + (j & 1) * 8 + ks * 4)
                c = vr("a", i * 8 + ks * 4)
                x, y = (c, w) if vwave else (w, c)
                st.mfma(f"{MF} {vr(k, r)}, {x}, {y}, {vr(k, r)}")
    top = [st.put(f"ds_read_b128 {vr('a', i * 8 + ks * 4)}, v{2 + ks} offset:{i * 2048}", 0, 3)
           for i in (6, 7) for ks in range(2)]
    barA = st.put("s_waitcnt lgkmcnt(0)", 8, 8)
    barA = st.put("s_barrier", 9, 9, after=barA)
    tog = [st.put(f"v_xor_b32 v{2 + ks}, 0x8000, v{2 + ks}", 20, 100, after=top) for ks in range(2)]
    last = None
    for j in range(1, 8):
        for ks in range(2):
            for hf in range(2):
                last = st.put(f"ds_read_b64_tr_b16 {vr('a', 64 + (j & 1) * 8 + ks * 4 + hf * 2, 2)}, v4 "
                              f"offset:{j * 32 + hf * 8448 + ks * 512}", 16 * (j - 1) + (4 if j == 1 else 1), 16 * (j - 1) + 9)
    wt = st.put("v_add_u32 v4, s37, v4", 106, 109, after=last)
    st.put("s_sub_u32 s37, 0, s37", 110, 120, after=wt)
    st.put("s_cmp_lt_u32 s38, 7", -1)
    st.put(f"s_cselect_b32 s{SRD_B + 2}, 4194304, 0", -1)
    st.put(f"s_cselect_b32 s{SRD_C + 2}, 4194304, 0", -1)
    st.put("s_cmp_lt_u32 s38, 6", 0)
    st.put(f"s_cselect_b32 s{SRD_A + 2}, 2097152, 0", 1)
    prev = None
    g = 3
    for mat in range(2):
        for e in range(4):
            m0 = st.put(f"s_add_u32 m0, s35, {mat * P1_WM + e * 1056}", g - 1, g - 1, after=prev)
            so = st.put(f"s_add_u32 s28, s33, {e * 8192}", g, g, after=prev)
            prev = st.put(f"buffer_load_dwordx4 v6, {S(SRD_B + 4 * mat)}, s28 offen lds", g + 1, g + 2,
                          after=[m0, so], dist=1, tok_w=["W"])
            g += 5
    st.put(f"s_add_u32 s33, s33, {64 * 8192}", g, g + 4, after=prev)
    u = st.put("s_add_u32 s35, s35, s36", g, g + 4, after=prev)
    st.put("s_sub_u32 s36, 0, s36", g + 1, g + 6, after=u)
    g = 52
    for pp in range(8):
        m0 = st.put(f"s_add_u32 m0, s34, {pp * 1024}", g - 1, g - 1, after=[prev, barA])
        so = st.put(f"s_add_u32 s28, s32, {pp * 8192}", g, g, after=prev)
        prev = st.put(f"buffer_load_dwordx4 v5, {S(SRD_A)}, s28 offen lds", g + 1, g + 2, after=[m0, so], dist=1)
        g += 7
    st.put("s_add_u32 s32, s32, 128", g, g + 3, after=prev)
    st.put("s_xor_b32 s34, s34, 0x8000", g, g + 3, after=prev)
    nb = st.put("", 110, 110, tok_r=["W"])
    nb = st.put("s_waitcnt lgkmcnt(0)", 110, 110, after=nb)
    barB = st.put("s_barrier", 111, 111, after=nb)
    for ks in range(2):
        for hf in range(2):
            st.put(f"ds_read_b64_tr_b16 {vr('a', 64 + ks * 4 + hf * 2, 2)}, v4 offset:{hf * 8448 + ks * 512}",
                   112, 120, after=[barB, wt])
    for i in range(6):
        for ks in range(2):
            st.put(f"ds_read_b128 {vr('a', i * 8 + ks * 4)}, v{2 + ks} offset:{i * 2048}", 113 + 2 * i,
                   min(127, 120 + 2 * i), after=[barB] + tog)
    st.put("s_add_u32 s38, s38, 1", 122, 124)
    st.put("s_cmp_lt_u32 s38, 8", 126, 126)
    a(".p2align 3")
    a(f"L_p1_{tag}:")
    over = st.emit(a)
    a(f"s_cbranch_scc1 L_p1_{tag}")
    return over


def phase1_store(a, vwave):
    a(f"s_lshl_b32 s28, {S_H}, 4")
    a(f"s_lshl_b32 s29, {S_I}, 1")
    a("s_add_u32 s28, s28, s29")
    a(f"s_and_b32 s29, {S_W}, 1")
    a("s_add_u32 s28, s28, s29")
    a("s_lshl_b32 s28, s28, 16")
    a(f"s_add_u32 s28, s28, {WS_KV + (32768 if vwave else 0)}")
    for m in range(32):
        if m < 30:
            b = 16 + 8 * m
        else:
            b = 16 + 8 * (m - 30) + 4 - 4
            for k in range(8):
                a(f"v_accvgpr_read_b32 v{b + k}, a{80 + 8 * (m - 30) + k}")
        for k in range(4):
            a(f"v_cvt_pk_bf16_f32 v{b + k}, v{b + 2 * k}, v{b + 2 * k + 1}")
        f = p1_frag(vwave, m)
        a(f"s_add_u32 s29, s28, {(f >> 2) * 4096}")
        a(f"buffer_store_dwordx4 {vr('v', b)}, v1, {S(SRD_WS)}, s29 offen offset:{(f & 3) * 1024} sc1")


def kernel_p1(ST):
    a = Asm()
    n = "p1_kernel"
    prologue(a, n)
    a("s_waitcnt lgkmcnt(0)")
    after_ptrs(a)
    phase1_start(a, ST)
    a(f"s_cmp_ge_u32 {S_W}, 2")
    a("s_cbranch_scc1 L_p1_vw")
    o1 = phase1_loop(a, False, "k")
    stamp(a, 4)
    phase1_store(a, False)
    a("s_branch L_p1_done")
    a("L_p1_vw:")
    o2 = phase1_loop(a, True, "v")
    stamp(a, 4)
    phase1_store(a, True)
    a("L_p1_done:")
    stamp(a, 5)
    stamp_dump(a, 0)
    kd = ending(a, n)
    return n, a, kd, 133120


P2_W0 = 82432
P2_WS = 24 * 1056
Q_SCALE = 0x3e0293ee
V_S, V_P, V_NM, V_L, V_Q, V_ND, V_ONE, V_T = 16, 80, 112, 128, 144, 208, 216, 220
A_X, A_Y = 128, 192


def p2_qacc(jb, q):
    return "v", 16 + (q * 4 + (jb >> 1)) * 8 + (jb & 1) * 4


def p2_facc(fb, q):
    return "a", (q * 2 + (fb >> 1)) * 8 + (fb & 1) * 4


def rowblocks(a, dst, mul, add):
    for q in range(4):
        if q < 2:
            a(f"s_sub_u32 s28, 15, {S_I}")
        else:
            a(f"s_mov_b32 s28, {S_I}")
        a("s_lshl_b32 s28, s28, 3")
        if q & 1:
            a("s_add_u32 s28, s28, 7")
            a(f"s_sub_u32 s28, s28, {S_W}")
        else:
            a(f"s_add_u32 s28, s28, {S_W}")
        a(f"s_mul_i32 s28, s28, {mul}")
        a(f"s_add_u32 s{dst + q}, s28, {add}")


def p2_wread(slotreg, jb, ks, hf, dst):
    off = (16896 + jb * 32 + hf * 128 + ks * 512) if jb < 4 else ((jb - 4) * 32 + hf * 8448 + ks * 512)
    return f"ds_read_b64_tr_b16 {vr('a', dst + ks * 4 + hf * 2, 2)}, {slotreg} offset:{off}"


def phase2_start(a):
    srd(a, SRD_A, 2, 5242880)
    srd(a, SRD_B, 7, 2211840)
    a(f"s_add_u32 s{SRD_C}, s{PTR + 22}, {WS_XN}")
    a(f"s_addc_u32 s{SRD_C + 1}, s{PTR + 23}, 0")
    a(f"s_and_b32 s{SRD_C + 1}, s{SRD_C + 1}, 0xffff")
    a(f"s_mov_b32 s{SRD_C + 2}, 2621440")
    a(f"s_mov_b32 s{SRD_C + 3}, 0x20000")
    a(f"s_cmp_eq_u32 {S_J}, 3")
    a("s_cselect_b32 s29, 6, 7")
    a(f"s_cmp_lt_u32 {S_HL}, s29")
    a("s_cselect_b32 s43, 2211840, 0")
    a(f"s_mov_b32 s{SRD_B + 2}, s43")
    rowblocks(a, 44, 20480, 0)
    a(f"s_mul_i32 s29, {S_J}, {46 * 1024}")
    a(f"s_add_u32 s29, s29, {WS_A}")
    rowblocks(a, 48, A_RB, "s29")
    for t in range(2):
        for q in range(4 - 2 * t):
            for ks in range(2):
                a(f"buffer_load_dwordx4 {vr('a', 64 + t * 32 + q * 8 + ks * 4)}, v1, {S(SRD_C)}, s{44 + q} offen "
                  f"offset:{t * 2048 + ks * 1024} sc1")
    for q in range(4):
        a(f"s_add_u32 s{44 + q}, s{44 + q}, {4096 if q < 2 else 2048}")
    a("v_bfe_u32 v7, v0, 4, 2")
    a("v_and_b32 v8, 15, v0")
    a("v_lshlrev_b32 v8, 4, v8")
    a("v_lshl_add_u32 v6, v7, 17, v8")
    a("v_bfe_u32 v7, v0, 3, 1")
    a("v_bfe_u32 v8, v0, 4, 2")
    a("v_lshlrev_b32 v8, 2, v8")
    a("v_add_lshl_u32 v7, v7, v8, 2")
    a("v_mul_u32_u24 v7, 0xd80, v7")
    a("v_and_b32 v8, 7, v0")
    a("v_lshl_add_u32 v5, v8, 4, v7")
    a(f"s_and_b32 s28, {S_W}, 1")
    a("s_lshl_b32 s28, s28, 3")
    a(f"s_lshr_b32 s29, {S_W}, 1")
    a("s_lshl_b32 s29, s29, 2")
    a("s_add_u32 s28, s28, s29")
    a("s_lshl_b32 s32, s28, 13")
    a(f"s_lshl_b32 s28, {S_H}, 8")
    a("s_add_u32 s32, s32, s28")
    a(f"s_and_b32 s28, {S_W}, 1")
    a("s_lshl_b32 s28, s28, 1")
    a(f"s_lshr_b32 s29, {S_W}, 1")
    a("s_lshl_b32 s29, s29, 3")
    a("s_add_u32 s28, s28, s29")
    a("s_mul_i32 s33, s28, 3456")
    a(f"s_mul_i32 s28, {S_J}, 7")
    a(f"s_add_u32 s28, s28, {S_HL}")
    a("s_lshl_b32 s28, s28, 7")
    a("s_add_u32 s33, s33, s28")
    a(f"s_mul_i32 s34, {S_W}, {4 * 1056}")
    a(f"s_add_u32 s34, s34, {P2_W0}")
    a(f"s_mul_i32 s35, {S_W}, {2 * 1056}")
    a(f"s_add_u32 s35, s35, {P2_W0 + 16896}")
    for t, slot in ((0, 2), (1, 0)):
        for e in range(4):
            a(f"s_add_u32 m0, s34, {slot * P2_WS + e * 1056}")
            a(f"s_add_u32 s28, s32, {(64 * t + e) * 8192}")
            a(f"buffer_load_dwordx4 v6, {S(SRD_A)}, s28 offen lds", tok_w=["QW%d" % t])
        for e in range(2):
            a(f"s_add_u32 m0, s35, {slot * P2_WS + e * 1056}")
            a(f"s_add_u32 s28, s33, {(64 * t + e) * 3456}")
            a(f"buffer_load_dwordx4 v5, {S(SRD_B)}, s28 offen lds", tok_w=["QW%d" % t])
    a(f"s_add_u32 s32, s32, {128 * 8192}")
    a(f"s_add_u32 s33, s33, {128 * 3456}")
    a(f"s_add_u32 s34, s34, {P2_WS}")
    a(f"s_add_u32 s35, s35, {P2_WS}")
    a(f"s_mov_b32 s36, {P2_WS}")
    a("s_mov_b32 s40, 1")
    a("s_mov_b32 s41, 2")
    a("v_bfe_u32 v8, v0, 4, 2")
    a("v_bfe_u32 v7, v0, 2, 2")
    a("v_and_b32 v11, 1, v8")
    a("v_lshl_add_u32 v7, v11, 2, v7")
    a("v_mul_u32_u24 v7, 0x420, v7")
    a("v_lshrrev_b32 v11, 1, v8")
    a("v_lshl_add_u32 v7, v11, 8, v7")
    a("v_and_b32 v11, 3, v0")
    a("v_lshl_add_u32 v7, v11, 3, v7")
    a(f"v_add_u32 v4, {P2_W0 + 2 * P2_WS}, v7")
    for r in range(16, 144):
        a(f"v_mov_b32 v{r}, 0")
    for r in range(64):
        a(f"v_accvgpr_write_b32 a{r}, 0")
    a.need("QW0")
    a("s_barrier")
    for ks in range(2):
        for hf in range(2):
            a(p2_wread("v4", 0, ks, hf, 128))
    a("s_mov_b32 s42, 0")


def phase2_loop(a):
    a(".p2align 3")
    a("L_p2:")
    a("s_cmp_lt_u32 s42, 4")
    a(f"s_cselect_b32 s{SRD_A + 2}, 5242880, 0")
    a(f"s_cselect_b32 s{SRD_B + 2}, s43, 0")
    over = 0
    for par in range(2):
        st = Stream()
        xb = 64 + par * 32
        for jb in range(12):
            for q in range(4):
                k, r = p2_facc(jb, q) if jb < 4 else p2_qacc(jb - 4, q)
                for ks in range(2):
                    st.mfma(f"{MF} {vr(k, r)}, {vr('a', 128 + (jb & 1) * 8 + ks * 4)}, {vr('a', xb + q * 8 + ks * 4)}, {vr(k, r)}")
        last = None
        for jb in range(1, 12):
            for ks in range(2):
                for hf in range(2):
                    last = st.put(p2_wread("v4", jb, ks, hf, 128 + (jb & 1) * 8), 8 * (jb - 1), 8 * (jb - 1) + 2)
        c1 = st.put("s_cmp_eq_u32 s41, 2", 60, 60)
        c2 = st.put(f"s_cselect_b32 s39, {-2 * P2_WS & 0xffffffff}, s36", 60, 60, after=c1)
        c3 = st.put("s_cselect_b32 s41, -1, s41", 60, 60, after=c2)
        st.put("s_add_u32 s41, s41, 1", 61, 63, after=c3)
        wt = st.put("v_add_u32 v4, s39, v4", 83, 85, after=[last, c2])
        prev, g = None, 30
        for mat, e in [(0, 0), (0, 1), (0, 2), (0, 3), (1, 0), (1, 1)]:
            m0 = st.put(f"s_add_u32 m0, s{34 + mat}, {e * 1056}", g - 1, g - 1, after=prev)
            so = st.put(f"s_add_u32 s28, s{32 + mat}, {e * (3456 if mat else 8192)}", g, g, after=prev)
            prev = st.put(f"buffer_load_dwordx4 v{6 - mat}, {S(SRD_A + 4 * mat)}, s28 offen lds", g + 1, g + 3,
                          after=[m0, so], dist=1, tok_w=["QW%d" % par])
            g += 8
        d1 = st.put("s_cmp_eq_u32 s40, 2", 76, 76, after=prev)
        d2 = st.put(f"s_cselect_b32 s38, {-2 * P2_WS & 0xffffffff}, s36", 76, 76, after=d1)
        d3 = st.put("s_cselect_b32 s40, -1, s40", 76, 76, after=d2)
        st.put("s_add_u32 s40, s40, 1", 77, 82, after=d3)
        st.put("s_add_u32 s34, s34, s38", 77, 82, after=d3)
        st.put("s_add_u32 s35, s35, s38", 77, 82, after=d3)
        st.put(f"s_add_u32 s32, s32, {64 * 8192}", 77, 84, after=d3)
        st.put(f"s_add_u32 s33, s33, {64 * 3456}", 77, 84, after=d3)
        nb = st.put("", 86, 86, tok_r=["QW%d" % (par ^ 1)])
        nb = st.put("s_waitcnt lgkmcnt(0)", 86, 86, after=nb)
        bar = st.put("s_barrier", 87, 87, after=nb)
        for ks in range(2):
            for hf in range(2):
                st.put(p2_wread("v4", 0, ks, hf, 128), 88, 90, after=[bar, wt])
        ob = 64 + (par ^ 1) * 32
        g = 3
        for q in (2, 3):
            for ks in range(2):
                ld = st.put(f"buffer_load_dwordx4 {vr('a', ob + q * 8 + ks * 4)}, v1, {S(SRD_C)}, s{44 + q} offen "
                            f"offset:{ks * 1024} sc1", g, g + 3)
                g += 5
            st.put(f"s_add_u32 s{44 + q}, s{44 + q}, 2048", g, g + 4, after=ld)
        if par == 0:
            st.put(f"s_cselect_b32 s{SRD_C + 2}, 2621440, 0", 27, 27, after=ld, pre="s_cmp_lt_u32 s42, 4")
        g = 91
        for q in (0, 1):
            for ks in range(2):
                ld = st.put(f"buffer_load_dwordx4 {vr('a', xb + q * 8 + ks * 4)}, v1, {S(SRD_C)}, s{44 + q} offen "
                            f"offset:{ks * 1024} sc1", max(g, 89 + 2 * q), 95)
                g += 1
            st.put(f"s_add_u32 s{44 + q}, s{44 + q}, 2048", 93, 95, after=ld)
        over += st.emit(a)
    a("s_add_u32 s42, s42, 1")
    a("s_cmp_lt_u32 s42, 5")
    a("s_cbranch_scc1 L_p2")
    return over


def kv_dma(a, rel, tok):
    a(f"s_add_u32 s28, s54, {rel}")
    a("s_and_b32 m0, s28, 0x1ffff")
    out = []
    for k in range(4):
        out.append(Ins(f"buffer_load_dwordx4 v1, {S(SRD_D)}, s28 offen offset:{k * 1024} sc1 lds", tok_w=[tok]))
    return out


def att_srd(a):
    a(f"s_lshl_b32 s28, {S_H}, 20")
    a(f"s_add_u32 s28, s28, {WS_KV}")
    a(f"s_add_u32 s{SRD_D}, s{PTR + 22}, s28")
    a(f"s_addc_u32 s{SRD_D + 1}, s{PTR + 23}, 0")
    a(f"s_and_b32 s{SRD_D + 1}, s{SRD_D + 1}, 0xffff")
    a(f"s_sub_u32 s28, 16, {S_I}")
    a(f"s_lshl_b32 s{SRD_D + 2}, s28, 16")
    a(f"s_mov_b32 s{SRD_D + 3}, 0x20000")
    a(f"s_lshl_b32 s54, {S_W}, 12")


KV_FIRST = [(0, "K0"), (0x8000, "KV"), (0x4000, "KV"), (0xc000, "KV"), (0x10000, "KV"), (0x18000, "KV"), (0x14000, "KV")]


def phase2_end(a):
    att_srd(a)
    a("s_waitcnt lgkmcnt(0)")
    a("s_barrier")
    work = Asm()
    for q in range(4):
        for ks in range(4):
            b = 16 + (q * 4 + ks) * 8
            for k in range(8):
                work(f"v_mul_f32 v{b + k}, {hex(Q_SCALE)}, v{b + k}")
            for k in range(4):
                work(f"v_cvt_pk_bf16_f32 v{V_Q + (q * 4 + ks) * 4 + k}, v{b + 2 * k}, v{b + 2 * k + 1}")
    w = list(work.ins)
    per = len(w) // 28
    for rel, tok in KV_FIRST:
        for d in kv_dma(a, rel, tok):
            a.add(d)
            for _ in range(per):
                a.add(w.pop(0))
    for i in w:
        a.add(i)
    a("s_cmp_eq_u32 s43, 0")
    a("s_cbranch_scc1 L_p2_noffn")
    a(f"s_cmp_eq_u32 {S_J}, 3")
    a("s_cselect_b32 s29, 2, 0")
    a(f"s_lshl_b32 s28, {S_HL}, 1")
    a("s_add_u32 s29, s29, s28")
    a("s_lshl_b32 s29, s29, 10")
    for q in range(4):
        a(f"s_add_u32 s30, s{48 + q}, s29")
        for p in range(2):
            n = q * 2 + p
            x, t, o = 16 + (n & 1) * 24, 24 + (n & 1) * 24, 32 + (n & 1) * 24
            for k in range(8):
                a(f"v_accvgpr_read_b32 v{x + k}, a{n * 8 + k}")
            for k in range(8):
                a(f"v_mul_f32 v{t + k}, 0xbfb8aa3b, v{x + k}")
            for k in range(8):
                a(f"v_exp_f32 v{t + k}, v{t + k}")
            for k in range(8):
                a(f"v_add_f32 v{t + k}, 1.0, v{t + k}")
            for k in range(8):
                a(f"v_rcp_f32 v{t + k}, v{t + k}")
            for k in range(8):
                a(f"v_mul_f32 v{x + k}, v{x + k}, v{t + k}")
            for k in range(4):
                a(f"v_cvt_pk_bf16_f32 v{o + k}, v{x + 2 * k}, v{x + 2 * k + 1}")
            a(f"buffer_store_dwordx4 {vr('v', o)}, v1, {S(SRD_WS)}, s30 offen offset:{p * 1024} sc1", tok_w=["H"])
    a("L_p2_noffn:")


LDS_FLAG = 163832
S_MASK = 88


def att_step(a, mode, groups, dma=True, next_k=True, label=None, loop=None):
    st = Stream()
    single = mode == "single"
    kbuf = [A_X, A_Y]
    vbuf = [A_X, A_Y] if single else [A_Y]
    cend, kdead = {}, {}
    for g, (q, t, nkb, diag) in enumerate(groups):
        for kb in range(nkb):
            s = vr("v", V_S + (g * 4 + kb) * 4)
            c = vr("v", V_ND + (q & 1) * 4) if diag and kb == nkb - 1 else vr("v", V_NM + q * 4)
            for ks in range(4):
                n = st.mfma(f"{MF} {s}, {vr('a', kbuf[t] + (kb * 4 + ks) * 4)}, {vr('v', V_Q + (q * 4 + ks) * 4)}, "
                            f"{c if ks == 0 else s}")
                kdead[(t, kb * 4 + ks)] = n
            cend[(g, kb)] = n
    nqk = len(st.m)
    pstart, vfirst, vdead = {}, {}, {}
    for g, (q, t, nkb, diag) in enumerate(groups):
        nks = (nkb + 1) // 2
        l = vr("v", V_L + q * 4)
        for db in range(8):
            o = vr("a", (q * 8 + db) * 4)
            for ks in range(nks):
                n = st.mfma(f"{MF} {o}, {vr('a', vbuf[t] + (db * 2 + ks) * 4)}, {vr('v', V_P + (g * 2 + ks) * 4)}, {o}")
                pstart.setdefault((g, ks), n)
                vfirst.setdefault((t, db * 2 + ks), n)
                vdead[(t, db * 2 + ks)] = n
        for ks in range(nks):
            st.mfma(f"{MF} {l}, {vr('v', V_ONE)}, {vr('v', V_P + (g * 2 + ks) * 4)}, {l}")
    nm = len(st.m)
    for g, (q, t, nkb, diag) in enumerate(groups):
        for kb in range(nkb):
            dl = pstart[(g, kb >> 1)] - 2
            s = V_S + (g * 4 + kb) * 4
            ex = [st.put(f"v_exp_f32 v{s + r}, v{s + r}", cend[(g, kb)] + 5, dl - 1) for r in range(4)]
            for h in range(2):
                st.put(f"v_cvt_pk_bf16_f32 v{V_P + (g * 2 + (kb >> 1)) * 4 + (kb & 1) * 2 + h}, v{s + 2 * h}, v{s + 2 * h + 1}",
                       cend[(g, kb)] + 6, dl, after=ex[2 * h:2 * h + 2], dist=1)
        if nkb & 1:
            for h in range(2):
                st.put(f"v_mov_b32 v{V_P + (g * 2 + (nkb >> 1)) * 4 + 2 + h}, 0", 0, pstart[(g, nkb >> 1)] - 2)

    def half(g0, reads, last_gap):
        w = st.put("s_waitcnt vmcnt(%d) lgkmcnt(0)" % (16 if dma or g0 <= 0 else 8), g0, g0)
        bar = st.put("s_barrier", g0 + 1 if g0 >= 0 else g0, g0 + 1 if g0 >= 0 else g0, after=w)
        its = [st.put(t, max(lo, g0 + 1), max(hi, g0 + 2), after=[bar] + list(aft)) for t, lo, hi, aft in reads]
        if dma:
            span = last_gap - g0 - 4
            p = st.put("s_add_u32 s28, s52, 0x8000", g0 + 2, g0 + 3, after=bar)
            p = st.put("s_and_b32 m0, s28, 0x1ffff", g0 + 2, g0 + 4, after=p)
            for k in range(8):
                lo = g0 + 4 + (k * span) // 9
                if k == 4:
                    p = st.put("s_and_b32 m0, s53, 0x1ffff", lo - 2, lo, after=p)
                p = st.put(f"buffer_load_dwordx4 v1, {S(SRD_D)}, {'s28' if k < 4 else 's53'} offen offset:{(k & 3) * 1024} sc1 lds",
                           lo, lo + span // 9 + 2, after=p, dist=1)
            p = st.put("s_mov_b32 s52, s53", last_gap - 3, last_gap - 2, after=p)
            p = st.put("s_add_u32 s53, s53, s56", last_gap - 3, last_gap - 1, after=p)
            st.put("s_xor_b32 s56, s56, 0x8000", last_gap - 3, last_gap - 1, after=p)
        return its

    def vreads(t, reg, off):
        out = []
        for db in range(8):
            for ks in range(2):
                f = db * 2 + ks
                if (t, f) not in vfirst:
                    continue
                lo = kdead.get((t, f), -1) + 1 if single else 0
                out.append((f"ds_read_b128 {vr('a', vbuf[t] + f * 4)}, {reg} offset:{off + (ks * 8 + db) * 1024}",
                            lo, vfirst[(t, f)] - 7, ()))
        return out

    def kreads(buf, reg, off, dead, hi, aft=(), only=None):
        return [(f"ds_read_b128 {vr('a', buf + f * 4)}, {reg} offset:{off + f * 1024}", dead(f) + 1, hi(f), aft)
                for f in range(16) if only is None or f in only]

    if single:
        need_b = {f for (t, f) in kdead if t == 1}
        firstb = {}
        n = 0
        for g, (q, t, nkb, diag) in enumerate(groups):
            for f in range(nkb * 4):
                if t == 1:
                    firstb.setdefault(f, n)
                n += 1
        r0 = kreads(A_Y, "v2", 0x4000, lambda f: -1, lambda f: firstb[f] - 7, only=need_b) + vreads(0, "v2", 0x8000)
        half(-1 if label is None else 0, r0, nqk)
        x = st.put("v_xor_b32 v3, 0x10000, v2", 0, nqk)
        r1 = vreads(1, "v2", 0xc000)
        if next_k:
            r1 += kreads(A_X, "v3", 0, lambda f: vdead[(0, f)], lambda f: nm - 8 + (f >> 2) * 2 - 4, aft=[x])
        its = half(nqk - 1, r1, nm)
        st.put("v_mov_b32 v2, v3", nm - 3, nm - 1, after=its + [x])
    else:
        voff = 0xc000 if mode == "dualB" else 0x8000
        dead = lambda f: kdead.get((0, f), -1)
        hi = lambda f: nm - 12 + (f >> 2) * 2
        if mode == "dualA":
            its = half(0, vreads(0, "v2", voff) + kreads(A_X, "v2", 0x4000, dead, hi), nm)
        elif mode == "dualB":
            x = st.put("v_xor_b32 v3, 0x10000, v2", 0, nqk - 20)
            its = half(0, vreads(0, "v2", voff) + kreads(A_X, "v3", 0, dead, hi, aft=[x]), nm)
            st.put("v_mov_b32 v2, v3", nm - 3, nm - 1, after=its + [x])
        else:
            its = half(0, vreads(0, "v2", voff) + kreads(A_X, "v3", 0, dead, hi), nm)
            p = st.put("v_mov_b32 v2, v3", nm - 4, nm - 3, after=its)
            p = st.put("v_add_u32 v3, s57, v3", nm - 4, nm - 2, after=p)
            st.put("v_and_b32 v3, 0x1ffff, v3", nm - 4, nm - 1, after=p)
            st.put("s_xor_b32 s57, s57, 0x8000", nm - 2, nm - 2, after=p)
    if loop:
        p = st.put("s_sub_u32 s55, s55, 1", nm - 8, nm - 6)
    if label:
        a(".p2align 3")
        a(label + ":")
    over = st.emit(a)
    if loop:
        a("s_cmp_lg_u32 s55, 0")
        a(f"s_cbranch_scc1 {loop}")
    return over, nm


def att_diag_bias(a, q0):
    a(f"v_mov_b32 v{V_T}, 0xf149f2ca")
    for h in range(2):
        for r in range(4):
            a(f"v_cndmask_b32 v{V_ND + h * 4 + r}, v{V_T}, v{V_NM + (q0 + h) * 4}, s[{S_MASK + 2 * r}:{S_MASK + 2 * r + 1}]")


def att_finish(a, q0):
    a(f"s_lshl_b32 s29, {S_HL}, 12")
    a(f"s_add_u32 s29, s29, {14 * 1024}")
    for q in (q0, q0 + 1):
        l = V_L + q * 4
        a(f"v_cmp_nlt_f32 vcc, 0x21800000, v{l}")
        a("s_or_b64 s[62:63], s[62:63], vcc")
        a(f"v_cmp_ngt_f32 vcc, 0x5d800000, v{l}")
        a("s_or_b64 s[62:63], s[62:63], vcc")
        a(f"v_rcp_f32 v{l}, v{l}")
        a(f"s_add_u32 s30, s{48 + q}, s29")
        for dp in range(4):
            x = V_T + (dp & 1) * 12
            for k in range(8):
                a(f"v_accvgpr_read_b32 v{x + k}, a{(q * 8 + dp * 2) * 4 + k}")
            for k in range(8):
                a(f"v_mul_f32 v{x + k}, v{x + k}, v{l}")
            for k in range(4):
                a(f"v_cvt_pk_bf16_f32 v{x + 8 + k}, v{x + 2 * k}, v{x + 2 * k + 1}")
            a(f"buffer_store_dwordx4 {vr('v', x + 8)}, v1, {S(SRD_WS)}, s30 offen offset:{dp * 1024} sc1", tok_w=["CTX"])


def rowmax_to_negm(a, src):
    for sw in ("v_permlane16_swap_b32", "v_permlane32_swap_b32"):
        for q in range(4):
            a(f"v_mov_b32 v{V_T + q}, v{src(q)}")
        for q in range(4):
            a(f"{sw} v{src(q)}, v{V_T + q}")
        for q in range(4):
            a(f"v_max_f32 v{src(q)}, v{src(q)}, v{V_T + q}")
    for q in range(4):
        for r in range(4):
            a(f"v_sub_f32 v{V_NM + q * 4 + r}, 0, v{src(q)}")


def phase3(a):
    info = []
    a("s_mov_b32 s60, 0")
    a("v_bfe_u32 v7, v0, 4, 2")
    a("v_and_b32 v8, 15, v0")
    a("v_lshlrev_b32 v7, 2, v7")
    for r in range(4):
        a(f"v_add_u32 v9, {r}, v7")
        a(f"v_cmp_le_u32 s[{S_MASK + 2 * r}:{S_MASK + 2 * r + 1}], v9, v8")
    for r in range(4):
        a(f"v_mov_b32 v{V_ONE + r}, 0x3f803f80")
    a("L_att:")
    a(f"v_mov_b32 v7, {LDS_FLAG}")
    a("v_mov_b32 v8, 0")
    a("ds_write_b32 v7, v8")
    a("s_mov_b64 s[62:63], 0")
    a("s_add_u32 s52, s54, 0x14000")
    a("s_add_u32 s53, s54, 0x20000")
    a("s_mov_b32 s56, 0x4000")
    a("s_mov_b32 s57, 0xc000")
    a("v_mov_b32 v2, v1")
    a("v_add_u32 v3, 0x4000, v1")
    for r in range(128):
        a(f"v_accvgpr_write_b32 a{r}, 0")
    for r in range(16):
        a(f"v_mov_b32 v{V_L + r}, 0")
    a.need("K0")
    a("s_barrier")
    for f in range(16):
        a(f"ds_read_b128 {vr('a', A_X + f * 4)}, v2 offset:{f * 1024}")
    a("s_cmp_lg_u32 s60, 0")
    a("s_cbranch_scc1 L_att_go")
    for q in range(4):
        for ks in range(4):
            s = vr("v", V_S + q * 4)
            a(f"{MF} {s}, {vr('a', A_X + ks * 4)}, {vr('v', V_Q + (q * 4 + ks) * 4)}, {'0' if ks == 0 else s}")
    for q in range(4):
        s = V_S + q * 4
        a(f"v_max3_f32 v{s}, v{s}, v{s + 1}, v{s + 2}")
        a(f"v_max_f32 v{s}, v{s}, v{s + 3}")
    rowmax_to_negm(a, lambda q: V_S + q * 4)
    a("L_att_go:")
    att_diag_bias(a, 2)
    stamp(a, 8)
    full = lambda q, t=0: (q, t, 4, False)
    a(f"s_lshl_b32 s55, {S_I}, 1")
    a("s_cmp_eq_u32 s55, 0")
    a("s_cbranch_scc1 L_att_d")
    info.append(att_step(a, "dual", [full(0), full(1), full(2), full(3)], label="L_att_dual", loop="L_att_dual"))
    a("L_att_d:")
    stamp(a, 9)
    for w in range(4):
        if w < 3:
            a(f"s_cmp_lg_u32 {S_W}, {w}")
            a(f"s_cbranch_scc1 L_att_d{w + 1}")
        info.append(att_step(a, "dualA", [full(0), full(3), (2, 0, w + 1, True), full(1)]))
        info.append(att_step(a, "dualB", [full(0), (3, 0, 4 - w, True), full(1)]))
        if w < 3:
            a("s_branch L_att_dd")
            a(f"L_att_d{w + 1}:")
    a("L_att_dd:")
    stamp(a, 10)
    att_finish(a, 2)
    att_diag_bias(a, 0)
    stamp(a, 11)
    a(f"s_lshl_b32 s55, {S_I}, 1")
    a("s_sub_u32 s55, 14, s55")
    a("s_cmp_eq_u32 s55, 0")
    a("s_cbranch_scc1 L_att_e")
    info.append(att_step(a, "single", [full(0), full(1), full(0, 1), full(1, 1)], label="L_att_single",
                         loop="L_att_single"))
    a("L_att_e:")
    stamp(a, 12)
    for w in range(4):
        if w < 3:
            a(f"s_cmp_lg_u32 {S_W}, {w}")
            a(f"s_cbranch_scc1 L_att_e{w + 1}")
        info.append(att_step(a, "single", [full(1), (0, 0, w + 1, True), (1, 1, 4 - w, True)], dma=False, next_k=False))
        if w < 3:
            a("s_branch L_att_ee")
            a(f"L_att_e{w + 1}:")
    a("L_att_ee:")
    stamp(a, 13)
    att_finish(a, 0)
    a("s_cmp_lg_u64 s[62:63], 0")
    a("s_cselect_b32 s28, 1, 0")
    a(f"v_mov_b32 v7, {LDS_FLAG}")
    a("v_mov_b32 v8, s28")
    a("ds_or_b32 v7, v8")
    a("s_waitcnt lgkmcnt(0)")
    a("s_barrier")
    a("ds_read_b32 v8, v7")
    a("v_readfirstlane_b32 s28, v8")
    a("s_cmp_gt_u32 s28, s60")
    a("s_cbranch_scc0 L_att_done")
    a("s_mov_b32 s60, 1")
    rowblocks(a, 40, 16, 0)
    a("v_and_b32 v8, 15, v0")
    a("v_bfe_u32 v7, v0, 4, 2")
    a("v_lshlrev_b32 v7, 2, v7")
    for q in range(4):
        a(f"v_add_u32 v{V_P + q}, s{40 + q}, v8")
        a(f"v_mov_b32 v{V_P + 4 + q}, 0xf149f2ca")
    a(f"s_sub_u32 s55, 16, {S_I}")
    a("s_lshl_b32 s55, s55, 3")
    a("s_mov_b32 s61, 0")
    a("L_att_max:")
    a("s_lshr_b32 s28, s61, 3")
    a("s_lshl_b32 s28, s28, 16")
    a("s_and_b32 s29, s61, 7")
    a("s_lshl_b32 s29, s29, 12")
    a("s_add_u32 s28, s28, s29")
    for ks in range(4):
        a(f"buffer_load_dwordx4 {vr('a', A_X + ks * 4)}, v1, {S(SRD_D)}, s28 offen offset:{ks * 1024} sc1")
    for q in range(4):
        for ks in range(4):
            s = vr("v", V_S + q * 4)
            a(f"{MF} {s}, {vr('a', A_X + ks * 4)}, {vr('v', V_Q + (q * 4 + ks) * 4)}, {'0' if ks == 0 else s}")
    for r in range(4):
        a(f"v_add_u32 v9, {r}, v7")
        for q in range(4):
            a(f"v_cmp_le_u32 vcc, v9, v{V_P + q}")
            a(f"v_max_f32 v10, v{V_P + 4 + q}, v{V_S + q * 4 + r}")
            a(f"v_cndmask_b32 v{V_P + 4 + q}, v{V_P + 4 + q}, v10, vcc")
    a("v_add_u32 v7, 16, v7")
    a("s_add_u32 s61, s61, 1")
    a("s_cmp_lt_u32 s61, s55")
    a("s_cbranch_scc1 L_att_max")
    rowmax_to_negm(a, lambda q: V_P + 4 + q)
    a("s_barrier")
    for rel, tok in KV_FIRST:
        for d in kv_dma(a, rel, tok):
            a.add(d)
    a("s_branch L_att")
    a("L_att_done:")
    print("attention steps (overflow slots, mfmas):", info, file=sys.stderr)


def kernel_p23(ST):
    a = Asm()
    n = "p23_kernel"
    prologue(a, n)
    a("s_waitcnt lgkmcnt(0)")
    after_ptrs(a)
    phase2_start(a)
    stamp(a, 5)
    o = phase2_loop(a)
    print("p2 overflow", o, file=sys.stderr)
    stamp(a, 6)
    phase2_end(a)
    stamp(a, 7)
    phase3(a)
    stamp(a, 14)
    stamp_dump(a, 1)
    kd = ending(a, n)
    return n, a, kd, 163840


P4_ST = 20480
P4_LEAD = 4


def p4_acc(cb, r):
    return 16 + (r * 10 + cb) * 4


def p4_wread(sub, cb, ks, hf):
    reg = 2 + (cb & 1) + (2 if sub >= 2 else 0)
    off = (sub & 1) * P4_ST + ks * 10240 + hf * 5120 + (cb >> 1) * 64
    return f"ds_read_b64_tr_b16 {vr('a', 64 + (cb % 5) * 8 + ks * 4 + hf * 2, 2)}, v{reg} offset:{off}"


def p4_select(put):
    put("s_cmp_lt_u32 s40, s41\n"
        f"s_cselect_b64 s[{SRD_C}:{SRD_C + 1}], s[{SRD_A}:{SRD_A + 1}], s[{SRD_B}:{SRD_B + 1}]\n"
        f"s_cselect_b32 s{SRD_C + 2}, s{SRD_A + 2}, s{SRD_B + 2}\n"
        "s_cselect_b32 s31, s32, s33")
    put(f"s_cmp_lt_u32 s40, s42\ns_cselect_b32 s{SRD_C + 2}, s{SRD_C + 2}, 0")


def phase4_start(a):
    srd(a, SRD_A, 8, 2211840)
    srd(a, SRD_B, 5, 5242880)
    a(f"s_mov_b32 s{SRD_C + 3}, 0x20000")
    a(f"s_mov_b32 s{SRD_D}, s{PTR + 22}")
    a(f"s_and_b32 s{SRD_D + 1}, s{PTR + 23}, 0xffff")
    a(f"s_mov_b32 s{SRD_D + 2}, {WS_SIZE}")
    a(f"s_mov_b32 s{SRD_D + 3}, 0x20000")
    a(f"s_sub_u32 s28, 15, {S_I}")
    a(f"s_bitcmp1_b32 {S_HL}, 0 ;scc")
    a(f"s_cselect_b32 s44, s28, {S_I}")
    a(f"s_lshr_b32 s45, {S_HL}, 1")
    a(f"s_cmp_eq_u32 {S_J}, 3")
    a("s_cselect_b32 s41, 6, 7")
    a("s_cselect_b32 s29, 2048, 0")
    a("s_add_u32 s42, s41, 16")
    a("s_lshl_b32 s28, s44, 3")
    a(f"s_lshl_b32 s30, {S_W}, 1")
    a("s_add_u32 s46, s28, s30")
    a(f"s_mul_i32 s28, s46, {A_RB}")
    a(f"s_mul_i32 s30, {S_J}, {46 * 1024}")
    a("s_add_u32 s28, s28, s30")
    a("s_add_u32 s28, s28, s29")
    a(f"s_add_u32 s34, s28, {WS_A}")
    a(f"s_add_u32 s35, s34, {A_RB}")

    def aload(t):
        for r in range(2):
            for ks in range(2):
                a(f"buffer_load_dwordx4 {vr('a', t * 16 + r * 8 + ks * 4)}, v1, {S(SRD_D)}, s{34 + r} offen offset:{ks * 1024} sc1")
            a(f"s_add_u32 s{34 + r}, s{34 + r}, 2048")

    aload(0)
    a(f"s_mul_i32 s28, {S_W}, {16 * 1280}")
    a("s_mul_i32 s29, s45, 320")
    a("s_add_u32 s28, s28, s29")
    a(f"s_mul_i32 s29, {S_J}, {7 * 81920}")
    a("s_add_u32 s32, s28, s29")
    a(f"s_mul_i32 s29, {S_J}, {16 * 81920}")
    a("s_add_u32 s33, s28, s29")
    a("s_mul_i32 s29, s41, 81920")
    a("s_sub_u32 s33, s33, s29")
    a("v_and_b32 v11, 63, v0")
    for p in range(5):
        a(f"v_add_u32 v12, {64 * p}, v11")
        a("v_mul_u32_u24 v13, 0xccd, v12")
        a("v_lshrrev_b32 v13, 16, v13")
        a("v_mul_u32_u24 v14, 20, v13")
        a("v_sub_u32 v12, v12, v14")
        a("v_bfe_u32 v14, v13, 2, 1")
        a("v_lshlrev_b32 v14, 1, v14")
        a("v_xor_b32 v12, v12, v14")
        a("v_mul_u32_u24 v13, 0x500, v13")
        a("v_lshl_add_u32 v12, v12, 4, v13")
        if p in (1, 2, 3):
            a(f"v_subrev_u32 v{6 + p}, {1024 * p}, v12")
        else:
            a(f"v_mov_b32 v{6 + p}, v12")
    a(f"s_mul_i32 s36, {S_W}, 5120")
    a("s_mov_b32 s40, 0")
    for t in range(P4_LEAD):
        p4_select(a)
        a("s_mov_b32 m0, s36")
        for p in range(5):
            if p == 4:
                a("s_add_u32 m0, s36, 4096")
            a(f"buffer_load_dwordx4 v{6 + p}, {S(SRD_C)}, s31 offen offset:{1024 * p if p < 4 else 0} lds", tok_w=["OW%d" % t])
        a(f"s_add_u32 s36, s36, {P4_ST}")
        a("s_add_u32 s32, s32, 81920")
        a("s_add_u32 s33, s33, 81920")
        a("s_add_u32 s40, s40, 1")
        if t in (1, 2):
            aload(t)
    a("v_bfe_u32 v11, v0, 2, 4")
    a("v_mul_u32_u24 v11, 0x140, v11")
    a("v_and_b32 v12, 3, v0")
    a("v_lshl_add_u32 v11, v12, 3, v11")
    a("v_bfe_u32 v12, v0, 4, 1")
    a("v_lshlrev_b32 v12, 5, v12")
    a("v_add_u32 v2, v11, v12")
    a("v_xor_b32 v12, 32, v12")
    a("v_add_u32 v3, v11, v12")
    a(f"v_add_u32 v4, {2 * P4_ST}, v2")
    a(f"v_add_u32 v5, {2 * P4_ST}, v3")
    a(f"s_mov_b32 s37, {4 * P4_ST}")
    for r in range(16, 96):
        a(f"v_mov_b32 v{r}, 0")
    a("s_mov_b32 s43, 0")
    a.need("OW0")
    a("s_barrier")
    for cb in range(3):
        for ks in range(2):
            for hf in range(2):
                a(p4_wread(0, cb, ks, hf))


def phase4_loop(a):
    a(".p2align 3")
    a("L_p4:")
    over = 0
    for sub in range(4):
        st = Stream()
        for cb in range(10):
            for r in range(2):
                c = vr("v", p4_acc(cb, r))
                for ks in range(2):
                    st.mfma(f"{MF} {c}, {vr('a', 64 + (cb % 5) * 8 + ks * 4)}, {vr('a', sub * 16 + r * 8 + ks * 4)}, {c}")
        last = None
        for cb in range(3, 10):
            for k in range(4):
                last = st.put(p4_wread(sub, cb, k >> 1, k & 1), 4 * (cb - 3) + k, 4 * (cb - 3) + k + 1)
        nb = st.put("", 26, 26, tok_r=["OW%d" % ((sub + 1) & 3)])
        bar = st.put("s_barrier", 27, 27, after=nb)
        tog = []
        if sub == 3:
            tog = [st.put(f"v_add_u32 v{2 + k}, s37, v{2 + k}", 2 + 2 * k, 12) for k in range(2)]
            tog2 = [st.put(f"v_add_u32 v{4 + k}, s37, v{4 + k}", 30, 36, after=last) for k in range(2)]
            st.put("s_sub_u32 s37, 0, s37", 37, 38, after=tog2)
        for cb in range(3):
            for k in range(4):
                st.put(p4_wread((sub + 1) & 3, cb, k >> 1, k & 1), 28 + 4 * cb + k, min(39, 29 + 4 * cb + k), after=[bar] + tog)
        seq = []
        p4_select(lambda t: seq.append(st.put(t.split("\n")[-1], 0, 1, pre="\n".join(t.split("\n")[:-1]), after=seq[-1:])))
        p = st.put("s_mov_b32 m0, s36", 1, 2, after=seq[-1])
        g = 3
        for k in range(5):
            if k == 4:
                p = st.put("s_add_u32 m0, s36, 4096", g - 1, g, after=p)
            p = st.put(f"buffer_load_dwordx4 v{6 + k}, {S(SRD_C)}, s31 offen offset:{1024 * k if k < 4 else 0} lds",
                       g, g + 1, after=p, dist=1, tok_w=["OW%d" % sub])
            g += 4
        u = st.put(f"s_add_u32 s36, s36, {P4_ST}", 21, 30, after=p)
        st.put("s_cselect_b32 s36, s38, s36", 22, 32, after=u, pre="s_cmp_ge_u32 s36, s39")
        st.put("s_add_u32 s32, s32, 81920", 21, 34, after=p)
        st.put("s_add_u32 s33, s33, 81920", 21, 35, after=p)
        st.put("s_add_u32 s40, s40, 1", 21, 36, after=p)
        c = st.put(f"s_cselect_b32 s{SRD_D + 2}, {WS_SIZE}, 0", 18, 20, pre="s_cmp_lt_u32 s43, s47")
        g = 23
        for r in range(2):
            for ks in range(2):
                p = st.put(f"buffer_load_dwordx4 {vr('a', ((sub + 3) & 3) * 16 + r * 8 + ks * 4)}, v1, {S(SRD_D)}, s{34 + r} offen "
                           f"offset:{ks * 1024} sc1", g, g + 1, after=[p, c])
                g += 4
            st.put(f"s_add_u32 s{34 + r}, s{34 + r}, 2048", g - 3, 39, after=p)
        st.put("s_add_u32 s43, s43, 1", 37, 38)
        over += st.emit(a)
        a("s_cmp_lt_u32 s43, s42")
        a("s_cbranch_scc0 L_p4_x" if sub < 3 else "s_cbranch_scc1 L_p4")
    a("L_p4_x:")
    return over


def spin(a, tag, srdn, soff, want, limit=20000):
    a(f"s_cmp_lg_u32 {S_W}, 0")
    a(f"s_cbranch_scc1 L_sp_{tag}_x")
    a(f"s_mov_b32 s30, {limit}")
    a(f"L_sp_{tag}:")
    a(f"buffer_load_dword v11, off, {S(srdn)}, {soff} sc1")
    a("s_sub_u32 s30, s30, 1")
    a("v_readfirstlane_b32 s31, v11")
    a(f"s_cmp_ge_u32 s31, {want}")
    a(f"s_cbranch_scc1 L_sp_{tag}_x")
    a("s_cmp_lg_u32 s30, 0")
    a(f"s_cbranch_scc1 L_sp_{tag}")
    a(f"L_sp_{tag}_x:")
    a("s_barrier")


def signal(a, tag, srdn, soff):
    a("s_waitcnt vmcnt(0)")
    a("s_barrier")
    a(f"s_cmp_lg_u32 {S_W}, 0")
    a(f"s_cbranch_scc1 L_sg_{tag}")
    a("v_mov_b32 v11, 1")
    a("s_mov_b64 exec, 1")
    a(f"buffer_atomic_add v11, off, {S(srdn)}, {soff} sc1")
    a("s_mov_b64 exec, -1")
    a(f"L_sg_{tag}:")


def phase4_end(a):
    srd(a, SRD_A, 0, 2621440)
    srd(a, SRD_B, 9, 2621440)
    srd(a, SRD_C, 10, 256)
    a("v_and_b32 v2, 15, v0")
    a("v_mul_u32_u24 v2, 0x500, v2")
    a("v_bfe_u32 v3, v0, 4, 2")
    a("v_lshl_add_u32 v2, v3, 3, v2")
    a("v_add_u32 v3, 4096, v1")
    a(f"s_and_b32 s28, {S_J}, 1")
    a("s_add_u32 s28, s28, s46")
    a(f"s_mul_i32 s32, s28, {16 * 1280}")
    a("s_mul_i32 s28, s45, 320")
    a("s_add_u32 s32, s32, s28")
    a(f"s_lshr_b32 s28, {S_J}, 1")
    a("s_mul_i32 s28, s28, 160")
    a("s_add_u32 s32, s32, s28")
    for k in range(5):
        a(f"buffer_load_dwordx2 {vr('v', 100 + 2 * k, 2)}, v2, {S(SRD_A)}, s32 offen offset:{32 * k}")
    a("s_lshl_b32 s33, s44, 2")
    a("s_add_u32 s33, s33, s45")
    a("s_mul_i32 s34, s33, 327680")
    a(f"s_mul_i32 s28, {S_W}, 5120")
    a("s_add_u32 s34, s34, s28")
    a(f"s_add_u32 s34, s34, {WS_EX}")
    a(f"s_mul_i32 s28, {S_J}, 20480")
    a("s_add_u32 s35, s34, s28")
    for o in range(4):
        for k in range(5):
            a(f"buffer_store_dwordx4 {vr('v', p4_acc(5 * (o >> 1) + k, o & 1))}, v{1 if k < 4 else 3}, {S(SRD_WS)}, s35 offen "
              f"offset:{1024 * k if k < 4 else 0} sc1")
        a("s_add_u32 s35, s35, 81920")
    a("s_lshl_b32 s33, s33, 2")
    signal(a, "ex", SRD_C, "s33")
    spin(a, "ex", SRD_C, "s33", 4)
    a(f"s_mul_i32 s28, {S_J}, 81920")
    a("s_add_u32 s35, s34, s28")
    for src in range(4):
        for k in range(5):
            a(f"buffer_load_dwordx4 {vr('v', 16 + (src * 5 + k) * 4)}, v{1 if k < 4 else 3}, {S(SRD_WS)}, s35 offen "
              f"offset:{1024 * k if k < 4 else 0} sc1")
        a("s_add_u32 s35, s35, 20480")
    for k in range(5):
        for e in range(4):
            d = 16 + k * 4 + e
            for src in range(1, 4):
                a(f"v_add_f32 v{d}, v{d}, v{16 + (src * 5 + k) * 4 + e}")
            if e & 1:
                a(f"v_and_b32 v110, 0xffff0000, v{100 + 2 * k + (e >> 1)}")
            else:
                a(f"v_lshlrev_b32 v110, 16, v{100 + 2 * k + (e >> 1)}")
            a(f"v_add_f32 v{d}, v{d}, v110")
        for e in range(2):
            a(f"v_cvt_pk_bf16_f32 v{112 + 2 * k + e}, v{16 + k * 4 + 2 * e}, v{16 + k * 4 + 2 * e + 1}")
        a(f"buffer_store_dwordx2 {vr('v', 112 + 2 * k, 2)}, v2, {S(SRD_B)}, s32 offen offset:{32 * k}")


def kernel_p4(ST):
    a = Asm()
    n = "p4_kernel"
    prologue(a, n)
    a("s_waitcnt lgkmcnt(0)")
    after_ptrs(a)
    phase4_start(a)
    a(f"s_mul_i32 s38, {S_W}, 5120")
    a(f"s_add_u32 s39, s38, {8 * P4_ST}")
    a("s_sub_u32 s47, s42, 3")
    stamp(a, 15)
    o = phase4_loop(a)
    print("p4 overflow", o, file=sys.stderr)
    stamp(a, 16)
    phase4_end(a)
    stamp(a, 17)
    stamp_dump(a, 2)
    kd = ending(a, n)
    return n, a, kd, 163840


def finish(kernels, path):
    head = ""
    body = '.amdgcn_target "amdgcn-amd-amdhsa--gfx950"\n.text\n'
    for n, a, kd, lds in kernels:
        insert_waits(a)
        k = check_hazards(a, fix=True)
        check_scc(a)
        print(n, "instructions", len(a.ins), "hazard pads", k, file=sys.stderr)
        head += f"; @launch kernel={n} grid=(256,1,1) block=(256,1,1) lds={lds}\n"
        body += a.text() + kd
    open(path, "w").write(head + body)


if __name__ == "__main__":
    ST = dict(kv.split("=") for kv in sys.argv[2:])
    ST = {k: int(v) for k, v in ST.items()}
    DIAG = bool(ST.get("diag", 0))
    finish([kernel_p1(ST), kernel_p23(ST), kernel_p4(ST)], sys.argv[1] if len(sys.argv) > 1 else "out.s")
```

```python
import re

REG_RE = re.compile(r"^(-|\|)?(abs\()?([vas])(?:(\d+)|\[(\d+):(\d+)\])\)?\|?$")
TRANS = ("v_exp_f32", "v_log_f32", "v_rcp_f32", "v_rsq_f32", "v_sqrt_f32", "v_sin_f32", "v_cos_f32")


def regs_of(op):
    op = op.strip()
    if op in ("vcc", "exec", "m0", "scc"):
        return [op]
    if op in ("vcc_lo", "vcc_hi"):
        return ["vcc"]
    m = REG_RE.match(op)
    if not m:
        return []
    k = m.group(3)
    if m.group(4) is not None:
        return [k + m.group(4)]
    return [k + str(i) for i in range(int(m.group(5)), int(m.group(6)) + 1)]


def split_ops(s):
    out, depth, cur = [], 0, ""
    for ch in s:
        if ch in "[(":
            depth += 1
        if ch in "])":
            depth -= 1
        if ch == "," and depth == 0:
            out.append(cur.strip())
            cur = ""
        else:
            cur += ch
    if cur.strip():
        out.append(cur.strip())
    return out


class Ins:
    def __init__(self, text, tok_w=(), tok_r=()):
        self.text = text
        self.tok_w = tuple(tok_w)
        self.tok_r = tuple(tok_r)
        self.w, self.r = [], []
        self.aw = []
        self.cnt = None
        self.target = None
        self.mn = ""
        t = text.split(";")[0].strip()
        if t == "":
            self.kind = "need" if tok_r else "dir"
            return
        if t.endswith(":"):
            self.kind = "label"
            self.name = t[:-1]
            return
        if t.startswith("."):
            self.kind = "dir"
            return
        p = t.split(None, 1)
        mn = p[0]
        self.mn = mn
        rest = p[1] if len(p) > 1 else ""
        ops = split_ops(rest)
        mods = ""
        if ops:
            q = ops[-1].split(None, 1)
            if len(q) > 1 and not ops[-1].startswith("hwreg"):
                ops[-1], mods = q[0], q[1]
        self.ops, self.mods = ops, mods
        R = lambda i: regs_of(ops[i]) if i < len(ops) else []
        base = mn.replace("_e32", "").replace("_e64", "")
        if mn.startswith("v_mfma"):
            self.kind = "mfma"
            self.w = R(0)
            self.ab = R(1) + R(2)
            self.c = R(3)
            self.r = self.ab + self.c
            self.passes = 8 if "32x32" in mn else 4
        elif mn.startswith("v_"):
            self.kind = "trans" if base in TRANS else "valu"
            self.w = R(0)
            self.r = [x for i in range(1, len(ops)) for x in R(i)]
            if base.startswith("v_permlane") and "swap" in base:
                self.w = R(0) + R(1)
                self.r = R(0) + R(1)
            if base in ("v_fmac_f32", "v_dot2c_f32_bf16", "v_writelane_b32"):
                self.r += R(0)
            if base in ("v_add_co_u32", "v_addc_co_u32", "v_sub_co_u32"):
                self.w = R(0) + R(1)
                self.r = [x for i in range(2, len(ops)) for x in R(i)]
            if "dpp" in mn or "row_" in mods or "quad_perm" in mods:
                self.dpp = True
                self.r += R(0)
        elif mn.startswith("ds_"):
            self.kind = "ds"
            self.cnt = "lgkm"
            if mn.startswith("ds_read") or "permute" in mn or "swizzle" in mn:
                self.aw = R(0)
                self.r = [x for i in range(1, len(ops)) for x in R(i)]
            else:
                self.r = [x for i in range(len(ops)) for x in R(i)]
        elif mn.startswith("buffer_") or mn.startswith("global_"):
            self.kind = "vmem"
            self.cnt = "vm"
            allr = lambda a: [x for i in range(a, len(ops)) for x in R(i)]
            if mn in ("buffer_inv", "buffer_wbl2"):
                pass
            elif "load" in mn and (" lds" in " " + mods or "_lds_" in mn):
                self.r = allr(0) + ["m0"]
                self.dma = True
            elif "load" in mn:
                self.aw = R(0)
                self.r = allr(1)
            elif "atomic" in mn and "sc0" in mods:
                self.aw = R(0)
                self.r = allr(0)
            else:
                self.r = allr(0)
                if "store" in mn and ("x4" in mn or "x3" in mn):
                    self.stdata = R(0) if mn.startswith("buffer") else R(1)
        elif mn.startswith("s_load") or mn in ("s_memtime", "s_memrealtime"):
            self.kind = "smem"
            self.cnt = "lgkm"
            self.aw = R(0)
            self.r = [x for i in range(1, len(ops)) for x in R(i)]
        elif mn == "s_waitcnt":
            self.kind = "wait"
            self.vm = self.lgkm = None
            m = re.search(r"vmcnt\((\d+)\)", rest)
            if m:
                self.vm = int(m.group(1))
            m = re.search(r"lgkmcnt\((\d+)\)", rest)
            if m:
                self.lgkm = int(m.group(1))
        elif mn.startswith("s_cbranch") or mn == "s_branch":
            self.kind = "branch"
            self.target = ops[0]
            if "vcc" in mn:
                self.r = ["vcc"]
            if "exec" in mn:
                self.r = ["exec"]
        elif mn == "s_endpgm":
            self.kind = "end"
        elif mn.startswith("s_"):
            self.kind = "salu"
            if mn.startswith("s_cmp") or mn in ("s_nop", "s_barrier", "s_sleep", "s_setprio"):
                self.r = [x for i in range(len(ops)) for x in R(i)]
            else:
                self.w = R(0)
                self.r = [x for i in range(1, len(ops)) for x in R(i)]
                if "saveexec" in mn:
                    self.w += ["exec"]
        else:
            raise ValueError("cannot parse: " + text)

    def states(self):
        if self.kind in ("label", "dir", "need"):
            return 0
        if self.mn == "s_nop":
            return int(self.ops[0], 0) + 1
        return 1


class Asm:
    def __init__(self):
        self.ins = []

    def __call__(self, text, tok_w=(), tok_r=()):
        lines = text.split("\n")
        for ln in lines:
            if ln.strip():
                self.ins.append(Ins(ln.strip(), tok_w, tok_r))

    def need(self, *toks):
        self.ins.append(Ins("", tok_r=toks))

    def add(self, ins):
        self.ins.append(ins)

    def text(self):
        out = []
        for i in self.ins:
            if i.kind == "need":
                continue
            if i.kind == "label" or i.kind == "dir":
                out.append(i.text)
            else:
                out.append("  " + i.text)
        return "\n".join(out) + "\n"


def cfg(ins):
    lab = {i.name: n for n, i in enumerate(ins) if i.kind == "label"}
    succ = []
    for n, i in enumerate(ins):
        s = []
        if i.kind == "end":
            pass
        elif i.kind == "branch":
            s.append(lab[i.target])
            if i.mn != "s_branch":
                s.append(n + 1)
        elif n + 1 < len(ins):
            s.append(n + 1)
        succ.append(s)
    pred = [[] for _ in ins]
    for n, s in enumerate(succ):
        for m in s:
            pred[m].append(n)
    return succ, pred


MAXC = {"vm": 63, "lgkm": 15}


def _step(s, i):
    if i.kind == "wait":
        for key in list(s):
            lim = i.vm if key[0] == "vm" else i.lgkm
            if lim is not None and s[key] >= lim:
                del s[key]
    if i.cnt:
        c = i.cnt
        for key in s:
            if key[0] == c:
                s[key] = min(s[key] + 1, 99)
        if i.kind == "smem":
            for key in s:
                if key[0] == c:
                    s[key] = 0
            s[(c, "@smem")] = 0
        elif (c, "@smem") in s:
            for key in s:
                if key[0] == c:
                    s[key] = 0
        for r in list(i.aw) + list(i.tok_w):
            s[(c, r)] = 0


def _blocks(ins):
    bl, cur = [], []
    for i in ins:
        if i.kind == "label" and cur:
            bl.append(cur)
            cur = []
        cur.append(i)
        if i.kind in ("branch", "end"):
            bl.append(cur)
            cur = []
    if cur:
        bl.append(cur)
    lab = {b[0].name: n for n, b in enumerate(bl) if b[0].kind == "label"}
    succ = []
    for n, b in enumerate(bl):
        e = b[-1]
        s = []
        if e.kind == "branch":
            s.append(lab[e.target])
            if e.mn != "s_branch":
                s.append(n + 1)
        elif e.kind != "end" and n + 1 < len(bl):
            s.append(n + 1)
        succ.append(s)
    return bl, succ


def _flow(bl, succ):
    st = [None] * len(bl)
    st[0] = {}
    work = [0]
    while work:
        k = work.pop()
        s = dict(st[k])
        for i in bl[k]:
            _step(s, i)
        for m in succ[k]:
            if st[m] is None:
                st[m] = dict(s)
                work.append(m)
            else:
                ch = False
                for key, v in s.items():
                    if key not in st[m] or st[m][key] > v:
                        st[m][key] = v
                        ch = True
                if ch:
                    work.append(m)
    return st


def _fix_block(b, s0, hoist):
    s = dict(s0)
    for k, i in enumerate(b):
        touched = set(i.r) | set(i.w) | set(i.tok_r) | set(i.aw)
        need = {}
        for (c, r), v in s.items():
            if r in touched:
                if r in i.aw and r not in i.r and i.cnt == c and i.kind != "smem":
                    continue
                need[c] = min(need.get(c, 99), v)
        if not need:
            _step(s, i)
            continue
        pos = k
        if hoist and i.kind == "mfma":
            j = k - 1
            cntd = {"vm": 0, "lgkm": 0}
            ok = True
            while j >= 0 and b[j].kind in ("valu", "trans", "ds", "vmem", "salu", "wait", "need") and k - j <= 5:
                if b[j].mn == "s_barrier":
                    ok = False
                    break
                if b[j].cnt:
                    cntd[b[j].cnt] += 1
                j -= 1
            if ok and j >= 0 and b[j].kind == "mfma" and all(need[c] - cntd[c] >= 0 for c in need):
                need = {c: need[c] - cntd[c] for c in need}
                pos = j + 1
        parts = {c: min(v, MAXC[c]) for c, v in need.items()}
        for p in (pos, pos - 1):
            if 0 <= p < len(b) and b[p].kind == "wait":
                o = b[p]
                if o.vm is not None:
                    parts["vm"] = min(parts.get("vm", 99), o.vm)
                if o.lgkm is not None:
                    parts["lgkm"] = min(parts.get("lgkm", 99), o.lgkm)
                del b[p]
                pos = p
                break
        t = "s_waitcnt" + (" vmcnt(%d)" % parts["vm"] if "vm" in parts else "") + (
            " lgkmcnt(%d)" % parts["lgkm"] if "lgkm" in parts else "")
        b.insert(pos, Ins(t))
        return True
    return False


def insert_waits(asm, hoist=True):
    bl, succ = _blocks(asm.ins)
    changed = True
    while changed:
        changed = False
        for k in range(len(bl)):
            st = _flow(bl, succ)
            if st[k] is None:
                continue
            selfloop = k in succ[k]
            while _fix_block(bl[k], st[k], hoist):
                changed = True
                if selfloop:
                    st = _flow(bl, succ)
    asm.ins = [i for b in bl for i in b]


def _need_states(p, c):
    n = 0
    pv = p.kind in ("valu", "trans")
    cv = c.kind in ("valu", "trans")
    pw = set(p.w)
    if pv:
        vw = {x for x in pw if x[0] in "va" and x != "vcc"}
        sw = {x for x in pw if x[0] == "s" or x == "vcc"}
        if c.kind == "mfma" and vw & set(c.r):
            n = max(n, 2)
        if cv and c.mn.startswith("v_permlane") and vw & set(c.r):
            n = max(n, 2)
        if cv and getattr(c, "dpp", False) and vw & set(c.r):
            n = max(n, 2)
        if cv and (c.mn.startswith("v_readfirstlane") or c.mn.startswith("v_readlane")) and vw & set(c.r):
            n = max(n, 1)
        if cv and sw & set(c.r):
            n = max(n, 4 if c.mn.startswith("v_readlane") or c.mn.startswith("v_writelane") else 2)
        if c.kind == "vmem" and sw & set(c.r):
            n = max(n, 5)
        if c.kind in ("salu", "branch", "smem") and sw & set(c.r):
            n = max(n, 1)
        if c.kind == "branch" and "vcc" in sw and "vcc" in c.r:
            n = max(n, 5)
        if p.kind == "trans" and c.kind == "valu" and vw & set(c.r):
            n = max(n, 1)
        if p.mn.startswith("v_dot") and c.mn != p.mn and vw & (set(c.r) | set(c.w)):
            n = max(n, 3)
    if p.kind == "mfma":
        full = 8 if p.passes == 4 else 12
        part = 6 if p.passes == 4 else 10
        war = 3 if p.passes == 4 else 7
        if c.kind == "mfma":
            if pw & set(c.ab):
                n = max(n, full)
            if pw & set(c.c) and (p.w != c.c or p.passes != c.passes):
                n = max(n, part)
            if pw & set(c.w) and p.w != c.c:
                n = max(n, part)
        elif cv:
            if pw & (set(c.r) | set(c.w)):
                n = max(n, full)
            if set(p.c) & set(c.w):
                n = max(n, war)
        elif c.kind in ("ds", "vmem"):
            if pw & (set(c.r) | set(c.aw)):
                n = max(n, full)
            if set(p.c) & set(c.aw):
                n = max(n, war)
    if p.kind == "salu" and "m0" in pw and getattr(c, "dma", False):
        n = max(n, 1)
    if p.kind == "salu" and "m0" in pw and cv and "m0" in c.r:
        n = max(n, 1)
    sd = getattr(p, "stdata", None)
    if sd and set(sd) & (set(c.w) | set(c.aw)):
        n = max(n, 2)
    return n


def check_hazards(asm, fix=True):
    added = 0
    start = 0
    while True:
        ins = asm.ins
        succ, pred = cfg(ins)
        bad = None
        for k in range(start, len(ins)):
            c = ins[k]
            if c.kind in ("label", "dir", "need", "wait", "end"):
                continue
            stack = [(p, 0) for p in pred[k]]
            seen = {}
            short = 0
            while stack:
                j, d = stack.pop()
                if d >= 12 or seen.get(j, 99) <= d:
                    continue
                seen[j] = d
                p = ins[j]
                if p.kind not in ("label", "dir", "need", "wait", "branch"):
                    n = _need_states(p, c)
                    if n > d and n - d > short:
                        short = n - d
                        who = p
                for q in pred[j]:
                    stack.append((q, d + p.states()))
            if short:
                bad = (k, short, who)
                break
        if not bad:
            return added
        k, short, who = bad
        if not fix:
            raise RuntimeError("hazard: %s -> %s needs %d more" % (who.text, ins[k].text, short))
        ins.insert(k, Ins("s_nop %d ; hz: %s" % (short - 1, who.text.split(";")[0][:60])))
        added += 1
        start = k


COST = {"s": 0, "d": 1, "v": 1, "t": 2, "m": 2}


class Item:
    def __init__(self, ins, main, lo, hi, after=(), dist=0):
        self.ins = ins
        self.lo, self.hi = lo, hi
        self.after = [a for a in after if a is not None]
        self.dist = dist
        self.gap = None
        cls = {"salu": "s", "wait": "s", "need": "s", "branch": "s", "label": "s", "ds": "d", "valu": "v", "trans": "t",
               "vmem": "m", "smem": "s"}
        self.cls = cls[main.kind]
        self.ns = sum(1 for i in ins if cls[i.kind] == "s" and i.kind not in ("need", "label"))
        self.cost = sum(COST[cls[i.kind]] for i in ins)
        self.lds = sum((1.0 if "b128" in i.mn else 0.5) for i in ins if i.kind == "ds")


class Stream:
    def __init__(self, lds_burst=3.0):
        self.m = []
        self.items = []
        self.burst = lds_burst

    def mfma(self, text):
        self.m.append(Ins(text))
        return len(self.m) - 1

    def put(self, text, lo, hi=None, after=(), dist=0, tok_w=(), tok_r=(), pre=None, post=None):
        if hi is None:
            hi = lo
        main = Ins(text, tok_w, tok_r)
        ins = ([Ins(t) for t in pre.split("\n")] if pre else []) + [main] + ([Ins(t) for t in post.split("\n")] if post else [])
        it = Item(ins, main, lo, hi, after if isinstance(after, (list, tuple)) else [after], dist)
        self.items.append(it)
        return it

    def _plan(self, bias, lone):
        n = len(self.m)
        for it in self.items:
            it.gap = None
        gaps = {g: [] for g in range(-1, n)}
        order = {id(it): k for k, it in enumerate(self.items)}
        todo = sorted(self.items, key=lambda it: (it.hi, order[id(it)]))
        over = 0
        bucket = self.burst
        for g in range(-1, n):
            cap, scal = 2, 1
            bucket = min(self.burst, bucket + 1.0)
            while True:
                ready = []
                for it in todo:
                    if it.lo > g or not all(a.gap is not None and (a.gap + it.dist <= g or g == n - 1) for a in it.after):
                        continue
                    ready.append(it)
                pick = next((it for it in ready if it.hi <= g or g == n - 1), None)
                if pick is None and g >= 0:
                    fit = []
                    for it in ready:
                        c = it.cost + max(0, it.ns - scal)
                        dep_same = it.cls in "dm" and any(a.gap == g and a.cls in "vt" for a in it.after)
                        if c <= cap and not dep_same and it.lds <= bucket:
                            fit.append((it.hi + bias.get(it.cls, 0), c, it))
                    fit.sort(key=lambda x: x[0])
                    free = [x for x in fit if x[1] == 0]
                    if free:
                        pick = free[0][2]
                    elif fit:
                        pick = fit[0][2]
                        if cap == 2 and fit[0][1] == 1:
                            two = [x for x in fit if x[1] == 2]
                            mates = [x for x in fit[1:] if x[1] == 1 and x[2].lds + pick.lds <= bucket]
                            if two and not mates and pick.hi - g > lone:
                                pick = two[0][2]
                if not pick:
                    break
                it = pick
                it.gap = g
                gaps[g].append(it)
                todo.remove(it)
                cap -= it.cost + max(0, it.ns - scal)
                scal = max(0, scal - it.ns)
                bucket -= it.lds
            if cap < 0 and 0 <= g < n - 1:
                over += -cap
            if bucket < 0:
                over += -bucket
        assert not todo, [it.ins[-1].text for it in todo]
        self.tail = sum(it.cost for it in gaps[n - 1])
        return over + max(0, self.tail - 2), gaps

    def emit(self, asm, search=False):
        n = len(self.m)
        best = None
        opts = [({}, 99)]
        if search:
            opts = [({"d": d, "v": v, "t": t}, lone) for d in (0, 6, 12, 20) for v in (0, 6, -6) for t in (0, -8, -16)
                    for lone in (1, 3)]
        for bias, lone in opts:
            over, _ = self._plan(bias, lone)
            if best is None or over < best[0]:
                best = (over, bias, lone)
        over, gaps = self._plan(best[1], best[2])
        rank = {"s": 0, "m": 1, "d": 1, "v": 2, "t": 2}
        for g in range(-1, n):
            if g >= 0:
                asm.add(self.m[g])
            its = gaps[g]
            done, out = set(), []
            pend = sorted(its, key=lambda it: (rank[it.cls], its.index(it)))
            while pend:
                for it in pend:
                    if all(a.gap != g or id(a) in done for a in it.after):
                        out.append(it)
                        done.add(id(it))
                        pend.remove(it)
                        break
                else:
                    raise RuntimeError("cyclic order in gap")
            for it in out:
                for i in it.ins:
                    asm.add(i)
        return over


_NO_SCC = ("s_mov_b32", "s_mov_b64", "s_cselect_b32", "s_cselect_b64", "s_mul_i32", "s_mul_hi_u32", "s_nop", "s_barrier",
           "s_sleep", "s_setprio", "s_getreg_b32", "s_movk_i32", "s_getpc_b64")


def check_scc(asm):
    ins = asm.ins
    succ, pred = cfg(ins)
    for k, c in enumerate(ins):
        if not (c.mn.startswith("s_cselect") or c.mn.startswith("s_cbranch_scc") or c.mn == "s_addc_u32"):
            continue
        stack, seen = list(pred[k]), set()
        while stack:
            j = stack.pop()
            if j in seen:
                continue
            seen.add(j)
            p = ins[j]
            if p.kind == "salu" and p.mn not in _NO_SCC:
                ok = p.mn.startswith("s_cmp") or (c.mn == "s_addc_u32" and p.mn == "s_add_u32") or ";scc" in p.text
                if not ok:
                    raise RuntimeError("SCC clobber: %s before %s" % (p.text, c.text))
                continue
            stack += pred[j]
```

```python
import sys
from asmlib import *

NAME = "parallel_sum__compressed_kv_cla__dense_activation_silu__prompt"
KN = NAME + "_kernel"

WS_CNT = 0
WS_XN = 0x10000
WS_KV = 0x400000
WS_A = 0x2400000
WS_EX = 0x3C00000
WS_DIAG = 0xF000000
WS_SIZE = 0x10000000
A_RB = 184 * 1024
C_KV, C_H, C_CTX, C_EX = 0, 32, 64, 96
OOB = 0x20000000

MF = "v_mfma_f32_16x16x32_bf16"
S_WG, S_W, S_H, S_I, S_J, S_HL = "s2", "s3", "s4", "s5", "s6", "s7"
SRD_WS = 8
PTR = 64
OPT = {}
DIAG = False
SLOW = []


def S(n):
    return f"s[{n}:{n + 3}]"


def vr(kind, n, w=4):
    return f"{kind}[{n}:{n + w - 1}]"


def srd(a, n, ptr, nbytes, add=None):
    if add is None:
        a(f"s_mov_b32 s{n}, s{PTR + 2 * ptr}")
        a(f"s_and_b32 s{n + 1}, s{PTR + 2 * ptr + 1}, 0xffff")
    else:
        a(f"s_add_u32 s{n}, s{PTR + 2 * ptr}, {add}")
        a(f"s_addc_u32 s{n + 1}, s{PTR + 2 * ptr + 1}, 0")
        a(f"s_and_b32 s{n + 1}, s{n + 1}, 0xffff")
    a(f"s_mov_b32 s{n + 2}, {nbytes}")
    a(f"s_mov_b32 s{n + 3}, 0x20000")


def stamp(a, k):
    if not DIAG:
        return
    a("s_memrealtime s[98:99]\ns_memtime s[100:101]\ns_waitcnt lgkmcnt(0)")
    a(f"v_writelane_b32 v15, s98, {k}\nv_writelane_b32 v15, s100, {32 + k}")


def stamp_dump(a):
    if not DIAG:
        return
    a("s_waitcnt vmcnt(0)")
    stamp(a, 31)
    a(f"s_lshl_b32 s98, {S_WG}, 2\ns_add_u32 s98, s98, {S_W}\ns_lshl_b32 s98, s98, 8")
    a(f"s_add_u32 s98, s98, {WS_DIAG}")
    a("v_lshrrev_b32 v14, 2, v1")
    a(f"buffer_store_dword v15, v14, {S(SRD_WS)}, s98 offen")


def rowblocks(a, dst, mul, add):
    for q in range(4):
        a(f"s_sub_u32 s28, 15, {S_I}" if q < 2 else f"s_mov_b32 s28, {S_I}")
        a("s_lshl_b32 s28, s28, 3")
        if q & 1:
            a("s_add_u32 s28, s28, 7")
            a(f"s_sub_u32 s28, s28, {S_W}")
        else:
            a(f"s_add_u32 s28, s28, {S_W}")
        a(f"s_mul_i32 s28, s28, {mul}")
        a(f"s_add_u32 s{dst + q}, s28, {add}")


def poll_text(load, reg, want, tag):
    b = Asm()
    b(f"L_sl_{tag}:")
    b("s_mov_b32 s30, 40000")
    b(f"L_sl_{tag}_l:")
    b("s_sleep 2")
    b(load)
    b("s_sub_u32 s30, s30, 1")
    b(f"v_cmp_gt_u32 vcc, {want}, {reg}")
    b("s_cmp_eq_u32 s30, 0")
    b(f"s_cbranch_scc1 L_bk_{tag}")
    b(f"s_cbranch_vccnz L_sl_{tag}_l")
    b(f"s_branch L_bk_{tag}")
    SLOW.append(b)
    return f"v_cmp_gt_u32 vcc, {want}, {reg}", f"s_cbranch_vccnz L_sl_{tag}", f"L_bk_{tag}:"


def sig_off(a, dst, line):
    a(f"s_lshl_b32 {dst}, {line}, 7")
    a(f"s_cmp_eq_u32 {S_W}, 0")
    a(f"s_cselect_b32 {dst}, {dst}, {OOB}")


def sig_text(soff, srdn=SRD_WS):
    return f"buffer_atomic_add v13, v12, {S(srdn)}, {soff} offen sc1"


P1_W0 = 65536
P1_WM = 16896
P1_WS = 2 * P1_WM
P1_X = 133120
SRD_C, SRD_WK, SRD_WV, SRD_DBG = 12, 16, 20, 24
SRD_WQ, SRD_W1, SRD_XN = 52, 56, 60
P2_SLOT = [133120, 0, 25344, 65536]
P2_REG = ["v4", "v2", "v2", "v3"]
P2_OFF = [0, 0, 25344, 0]


def pair_base(m):
    return ("a", 80 + 8 * m) if m < 2 else ("v", 16 + 8 * (m - 2))


def p1_acc(vwave, j, i):
    m, half = (8 * (i >> 1) + j, i & 1) if vwave else (4 * i + (j >> 1), j & 1)
    k, b = pair_base(m)
    return k, b + 4 * half


def entry(a):
    a(f".globl {KN}\n.p2align 8\n.type {KN},@function\n{KN}:")
    a("s_cmp_ge_u32 s2, 256")
    a("s_cbranch_scc1 L_end")
    a(f"s_load_dwordx16 s[{PTR}:{PTR + 15}], s[0:1], 0")
    a(f"s_load_dwordx8 s[{PTR + 16}:{PTR + 23}], s[0:1], 64")
    a("s_getpc_b64 s[96:97]")
    a("L_pc:")
    a("v_lshrrev_b32 v1, 6, v0")
    a("s_and_b32 s28, s2, 7")
    a(f"s_lshr_b32 {S_J}, s28, 1")
    a("v_readfirstlane_b32 s3, v1")
    a("s_and_b32 s28, s28, 1")
    a("s_lshr_b32 s29, s2, 3")
    a(f"s_and_b32 {S_HL}, s29, 7")
    a("s_lshr_b32 s29, s29, 3")
    a(f"s_lshl_b32 {S_H}, {S_J}, 3")
    a(f"s_add_u32 {S_H}, {S_H}, {S_HL}")
    a("s_and_b32 s30, s29, 1")
    a("s_xor_b32 s30, s30, s28")
    a(f"s_lshl_b32 {S_I}, s29, 1")
    a(f"s_add_u32 {S_I}, {S_I}, s30")
    a("v_and_b32 v1, 63, v0")
    a("v_cmp_eq_u32 vcc, 0, v1")
    a("v_mov_b32 v13, 2.0")
    a("v_lshlrev_b32 v1, 4, v1")
    a("v_cndmask_b32 v12, v13, 0, vcc")
    a("v_mov_b32 v13, 1")
    if DIAG:
        a("v_mov_b32 v15, 0")
    stamp(a, 0)
    if OPT.get("codepf", 1):
        a("s_lshr_b32 s28, s2, 3")
        a("s_lshl_b32 s28, s28, 2")
        a(f"s_add_u32 s28, s28, {S_W}")
        a("s_mul_i32 s28, s28, 640")
        a("v_and_b32 v7, 7, v0")
        a("v_lshlrev_b32 v7, 7, v7")
        a("v_add_u32 v7, s28, v7")
        a("v_min_u32 v7, L_end-L_pc, v7")
        a("global_load_dword v10, v7, s[96:97]")


def phase1_start(a):
    a("v_bfe_u32 v7, v0, 3, 3")
    a("v_and_b32 v8, 6, v7")
    a("v_and_b32 v11, 7, v0")
    a("v_xor_b32 v8, v8, v11")
    a("v_lshlrev_b32 v8, 4, v8")
    a("v_lshl_add_u32 v5, v7, 10, v8")
    a("v_mul_u32_u24 v9, 0x500, v11")
    a("v_lshl_add_u32 v9, v7, 4, v9")
    a("v_lshlrev_b32 v14, 4, v11")
    a("v_lshl_add_u32 v14, v7, 8, v14")
    a("v_bfe_u32 v7, v0, 4, 2")
    a("v_and_b32 v8, 15, v0")
    a("v_lshlrev_b32 v11, 4, v8")
    a("v_lshl_add_u32 v6, v7, 17, v11")
    a("v_and_b32 v11, 6, v8")
    a("v_xor_b32 v11, v11, v7")
    a("v_lshlrev_b32 v11, 4, v11")
    a("v_lshl_add_u32 v2, v8, 7, v11")
    a(f"s_and_b32 s28, {S_W}, 1")
    a("s_lshl_b32 s28, s28, 14")
    a("v_add_u32 v2, s28, v2")
    a("v_xor_b32 v3, 64, v2")
    a("v_bfe_u32 v8, v0, 2, 2")
    a("v_and_b32 v11, 1, v7")
    a("v_lshl_add_u32 v8, v11, 2, v8")
    a("v_mul_u32_u24 v8, 0x420, v8")
    a("v_lshrrev_b32 v11, 1, v7")
    a("v_lshl_add_u32 v8, v11, 8, v8")
    a("v_and_b32 v11, 3, v0")
    a("v_lshl_add_u32 v8, v11, 3, v8")
    a(f"s_lshr_b32 s28, {S_W}, 1")
    a(f"s_mul_i32 s28, s28, {P1_WM}")
    a(f"s_add_u32 s31, s28, {P1_W0}")
    a("v_add_u32 v4, s31, v8")
    a(f"s_add_u32 s91, s31, {P1_WS}")
    a(f"s_lshl_b32 s32, {S_I}, 18")
    a(f"s_lshl_b32 s28, {S_W}, 16")
    a("s_add_u32 s32, s32, s28")
    a(f"s_and_b32 s28, {S_W}, 1")
    a("s_lshl_b32 s28, s28, 3")
    a(f"s_lshr_b32 s29, {S_W}, 1")
    a("s_lshl_b32 s29, s29, 2")
    a("s_add_u32 s28, s28, s29")
    a("s_lshl_b32 s33, s28, 13")
    a(f"s_lshl_b32 s28, {S_H}, 8")
    a("s_add_u32 s33, s33, s28")
    a("s_mov_b32 s40, s33")
    a(f"s_lshl_b32 s34, {S_W}, 13")
    a(f"s_mul_i32 s42, {S_W}, {4 * 1056}")
    a(f"s_add_u32 s35, s42, {P1_W0}")
    a(f"s_mov_b32 s36, {-P1_WS & 0xffffffff}")
    a(f"s_mov_b32 s37, {P1_WS}")
    a(f"s_cmp_eq_u32 {S_W}, 0")
    a("s_cselect_b32 s39, 0, -1")
    a(f"s_and_b32 s28, {S_W}, 1")
    a("s_lshl_b32 s28, s28, 1")
    a(f"s_lshr_b32 s29, {S_W}, 1")
    a("s_lshl_b32 s29, s29, 3")
    a("s_add_u32 s28, s28, s29")
    a("s_mul_i32 s41, s28, 3456")
    a(f"s_mul_i32 s28, {S_J}, 7")
    a(f"s_add_u32 s28, s28, {S_HL}")
    a("s_min_u32 s92, s28, 26")
    a("s_lshl_b32 s28, s92, 7")
    a("s_add_u32 s41, s41, s28")
    a(f"s_mul_i32 s43, {S_W}, {2 * 1056}")
    a("s_add_u32 s43, s43, 16896")
    rowblocks(a, 44, 20480, 0)
    a(f"s_mul_i32 s29, {S_J}, {46 * 1024}")
    a(f"s_add_u32 s29, s29, {WS_A}")
    rowblocks(a, 48, A_RB, "s29")
    a(f"s_lshl_b32 s28, {S_H}, 4")
    a(f"s_lshl_b32 s29, {S_I}, 1")
    a("s_add_u32 s28, s28, s29")
    a(f"s_and_b32 s29, {S_W}, 1")
    a("s_add_u32 s28, s28, s29")
    a("s_lshl_b32 s28, s28, 1")
    a(f"s_lshr_b32 s29, {S_W}, 1")
    a("s_add_u32 s28, s28, s29")
    a("s_lshl_b32 s28, s28, 15")
    a(f"s_add_u32 s93, s28, {WS_KV}")
    for r in range(80, 256):
        a(f"v_mov_b32 v{r}, 0")
    for r in range(80, 96):
        a(f"v_accvgpr_write_b32 a{r}, 0")
    a("s_waitcnt lgkmcnt(0)")
    stamp(a, 1)
    srd(a, SRD_DBG, 0, 2621440)
    a(f"s_mul_i32 s29, {S_WG}, 10240")
    a(f"s_lshl_b32 s28, {S_W}, 7")
    a("s_add_u32 s29, s29, s28")
    a(f"s_lshl_b32 s28, {S_W}, 10")
    a(f"s_add_u32 s30, s28, {P1_X}")
    for k in range(3):
        if k == 2:
            a(f"s_cmp_ge_u32 {S_W}, 2")
            a("s_cbranch_scc1 L_x2")
        a(f"s_add_u32 m0, s30, {k * 4096}")
        a(f"s_add_u32 s28, s29, {k * 512}")
        a(f"buffer_load_dwordx4 v9, {S(SRD_DBG)}, s28 offen lds", tok_w=["X"])
    a("L_x2:")
    srd(a, SRD_C, 1, 2097152)

    def cdma(slot, t):
        for pp in range(8):
            a(f"s_add_u32 m0, s34, {slot * 32768 + pp * 1024}")
            a(f"s_add_u32 s28, s32, {pp * 8192 + t * 128}")
            a(f"buffer_load_dwordx4 v5, {S(SRD_C)}, s28 offen lds", tok_w=["C%d" % t])

    cdma(0, 0)
    srd(a, SRD_WS, 11, WS_SIZE)
    srd(a, SRD_WK, 3, 4194304)
    srd(a, SRD_WV, 4, 4194304)
    srd(a, SRD_DBG, 10, 256)
    srd(a, SRD_WQ, 2, 5242880)
    srd(a, SRD_W1, 7, 2211840)
    srd(a, SRD_XN, 11, 2621440, add=WS_XN)
    a(f"s_cmp_eq_u32 {S_J}, 3")
    a("s_cselect_b32 s29, 6, 7")
    a(f"s_cmp_lt_u32 {S_HL}, s29")
    a(f"s_cselect_b32 s{SRD_W1 + 2}, 2211840, 0")
    a("v_and_b32 v16, 63, v0")
    a(f"s_lshr_b32 s28, {S_I}, 1")
    a("s_lshl_b32 s28, s28, 2")
    a(f"s_add_u32 s94, s28, {S_W}")
    a(f"s_lshl_b32 s28, {S_I}, 5")
    a(f"s_lshl_b32 s29, {S_HL}, 2")
    a("s_add_u32 s28, s28, s29")
    a(f"s_add_u32 s28, s28, {S_W}")
    a("s_lshl_b32 s28, s28, 13")
    a("s_add_u32 s28, s28, 128")
    a("v_lshlrev_b32 v17, 10, v16")
    a("v_add_u32 v17, s28, v17")
    a(f"v_mov_b32 v8, s{PTR + 2}\nv_mov_b32 v9, s{PTR + 3}\nv_mov_b32 v7, 0x80")
    a("s_lshl_b32 s28, s94, 15")
    a(f"s_lshl_b32 s29, {S_H}, 8")
    a("s_add_u32 s28, s28, s29")
    a(f"s_add_u32 s28, s28, {64 * 8192}")
    a("v_bfe_u32 v18, v16, 1, 2")
    a("v_and_b32 v19, 1, v16")
    a("v_lshlrev_b32 v19, 7, v19")
    a("v_lshl_add_u32 v18, v18, 13, v19")
    a("v_add_u32 v18, s28, v18")
    for lo, ptr, off, step in ((8, 3, "v18", 64 * 8192), (16, 4, "v18", 64 * 8192), (24, 2, "v20", 128 * 8192),
                               (40, 7, "v21", 128 * 3456)):
        if lo == 24:
            a("s_lshl_b32 s28, s94, 16")
            a("s_add_u32 s28, s28, s29")
            a("v_subrev_u32 v20, 24, v16")
            a("v_bfe_u32 v20, v20, 1, 3")
            a("v_lshl_add_u32 v20, v20, 13, v19")
            a("v_add_u32 v20, s28, v20")
            a(f"s_mul_i32 s28, s94, {8 * 3456}")
            a("s_lshl_b32 s29, s92, 7")
            a("s_add_u32 s28, s28, s29")
            a("v_and_b32 v21, 7, v16")
            a("v_mul_u32_u24 v21, 0xd80, v21")
            a("v_add_u32 v21, s28, v21")
        a(f"v_cmp_le_u32 vcc, {lo}, v16")
        a(f"v_mov_b32 v22, s{PTR + 2 * ptr}\nv_mov_b32 v23, s{PTR + 2 * ptr + 1}\nv_mov_b32 v24, {step}")
        a(f"v_cndmask_b32 v17, v17, {off}, vcc")
        a("v_cndmask_b32 v8, v8, v22, vcc\nv_cndmask_b32 v9, v9, v23, vcc\nv_cndmask_b32 v7, v7, v24, vcc")
    a("v_add_co_u32 v8, vcc, v8, v17")
    a("v_addc_co_u32 v9, vcc, 0, v9, vcc")
    a.need("X")
    a("s_barrier")
    stamp(a, 2)
    a(f"s_mul_i32 s28, {S_W}, 3")
    for s in range(10):
        a(f"s_add_u32 s30, s28, {s}")
        a("s_cmp_ge_u32 s30, 10")
        a("s_cselect_b32 s31, 10, 0")
        a("s_sub_u32 s30, s30, s31")
        if s < 3:
            a(f"s_lshl_b32 s{88 + s}, s30, 11")
        a("s_lshl_b32 s30, s30, 10")
        a(f"s_add_u32 s30, s30, {P1_X}")
        a("v_add_u32 v11, s30, v1")
        a(f"ds_read_b128 {vr('v', 16 + 4 * s)}, v11")
    a("s_mov_b32 s28, 0x3f803f80")
    a("v_mov_b32 v60, 0\nv_mov_b32 v61, 0\nv_mov_b32 v62, 0\nv_mov_b32 v63, 0")
    wd = [(mat, e) for mat in range(2) for e in range(4)]
    for k in range(40):
        a(f"v_dot2_f32_bf16 v{60 + (k & 1)}, v{16 + k}, s28, v{60 + (k & 1)}")
        a(f"v_dot2_f32_bf16 v{62 + (k & 1)}, v{16 + k}, v{16 + k}, v{62 + (k & 1)}")
        if k % 5 == 4:
            mat, e = wd.pop(0)
            a(f"s_add_u32 m0, s35, {mat * P1_WM + e * 1056}")
            a(f"s_add_u32 s29, s33, {e * 8192}")
            a(f"buffer_load_dwordx4 v6, {S(SRD_WK + 4 * mat)}, s29 offen lds", tok_w=["W0"])
    a("v_add_f32 v60, v60, v61")
    a("v_add_f32 v62, v62, v63")
    a("v_add_f32_dpp v60, v60, v60 row_ror:8 row_mask:0xf bank_mask:0xf")
    a("v_add_f32_dpp v62, v62, v62 row_ror:8 row_mask:0xf bank_mask:0xf")
    for sw in ("v_permlane16_swap_b32", "v_permlane32_swap_b32"):
        a("v_mov_b32 v61, v60\nv_mov_b32 v63, v62")
        a(f"{sw} v60, v61\n{sw} v62, v63")
        a("v_add_f32 v60, v60, v61\nv_add_f32 v62, v62, v63")
    a("s_mov_b32 s28, 0x3acccccd")
    a("v_mul_f32 v60, s28, v60")
    a("v_mul_f32 v62, s28, v62")
    a("v_fma_f32 v62, -v60, v60, v62")
    a("v_max_f32 v62, 0, v62")
    a("v_cvt_pk_bf16_f32 v61, v60, v62")
    a("v_lshlrev_b32 v60, 16, v61")
    a("v_and_b32 v62, 0xffff0000, v61")
    a("v_add_f32 v62, 0x3727c5ac, v62")
    a("v_cvt_pk_bf16_f32 v62, v62, v62")
    a("v_and_b32 v62, 0xffff0000, v62")
    a("v_sqrt_f32 v62, v62")
    a("v_cvt_pk_bf16_f32 v62, v62, v62")
    a("v_and_b32 v62, 0xffff0000, v62")
    a("v_rcp_f32 v62, v62")
    a(f"s_lshr_b32 s28, {S_WG}, 1")
    a("s_mul_i32 s28, s28, 20480")
    a(f"s_and_b32 s29, {S_WG}, 1")
    a("s_lshl_b32 s29, s29, 7")
    a("s_add_u32 s28, s28, s29")
    for s in range(3):
        for k in range(4):
            r = 16 + 4 * s + k
            a(f"v_lshlrev_b32 v64, 16, v{r}")
            a(f"v_and_b32 v65, 0xffff0000, v{r}")
            a("v_sub_f32 v64, v64, v60")
            a("v_sub_f32 v65, v65, v60")
            a("v_cvt_pk_bf16_f32 v64, v64, v65")
            a("v_and_b32 v65, 0xffff0000, v64")
            a("v_lshlrev_b32 v64, 16, v64")
            a("v_mul_f32 v64, v64, v62")
            a("v_mul_f32 v65, v65, v62")
            a(f"v_cvt_pk_bf16_f32 v{68 + 4 * s + k}, v64, v65")
    for r in range(16, 68):
        a(f"v_mov_b32 v{r}, 0")
    for s in range(3):
        a(f"s_add_u32 s29, s28, s{88 + s}")
        a(f"buffer_store_dwordx4 {vr('v', 68 + 4 * s)}, v14, {S(SRD_XN)}, s29 offen sc1")
    sig_off(a, "s29", S_WG)
    a(f"buffer_store_dword v16, v12, {S(SRD_WS)}, s29 offen sc1")
    cdma(1, 1)
    if OPT.get("touch", 1):
        a("s_mov_b64 exec, 0xffffff")
        for k in range(2):
            a("global_load_dword v10, v[8:9], off")
            a("v_add_co_u32 v8, vcc, v8, v7")
            a("v_addc_co_u32 v9, vcc, 0, v9, vcc")
        a("s_mov_b64 exec, -1")
    for r in range(68, 80):
        a(f"v_mov_b32 v{r}, 0")
    a(f"s_add_u32 s33, s33, {64 * 8192}")
    a(f"s_add_u32 s35, s35, {P1_WS}")
    a("s_add_u32 s32, s32, 256")
    a(f"s_and_b32 s95, {S_WG}, 63")
    a("s_lshl_b32 s95, s95, 2")
    a("s_mov_b32 s38, 0")
    stamp(a, 3)
    a.need("C0", "W0")
    a("s_barrier")
    stamp(a, 4)
    for ks in range(2):
        for hf in range(2):
            a(f"ds_read_b64_tr_b16 {vr('a', 64 + ks * 4 + hf * 2, 2)}, v4 offset:{hf * 8448 + ks * 512}")
    for i in range(6):
        for ks in range(2):
            a(f"ds_read_b128 {vr('a', i * 8 + ks * 4)}, v{2 + ks} offset:{i * 2048}")


def p2_wread(R, seq):
    t, jb = seq[R]
    sl = (t + 3) & 3
    out = []
    for ks in range(2):
        for hf in range(2):
            off = (16896 + jb * 32 + hf * 128 + ks * 512) if jb < 4 else ((jb - 4) * 32 + hf * 8448 + ks * 512)
            out.append(f"ds_read_b64_tr_b16 {vr('a', (R % 3) * 8 + ks * 4 + hf * 2, 2)}, {P2_REG[sl]} offset:{P2_OFF[sl] + off}")
    return out


def p2_dma(st, t, lo, hi, prev):
    slot = P2_SLOT[(t + 3) & 3]
    for k, (mat, e) in enumerate([(0, 0), (0, 1), (0, 2), (0, 3), (1, 0), (1, 1)]):
        g = lo + 2 + (k * (hi - lo - 2)) // 6
        m0 = st.put(f"s_add_u32 m0, s{42 + mat}, {slot + e * 1056}", g - 2, g - 1, after=prev)
        so = st.put(f"s_add_u32 s28, s{40 + mat}, {(64 * t + e) * (3456 if mat else 8192)}", g - 2, g - 1, after=prev)
        prev = st.put(f"buffer_load_dwordx4 v{6 - mat}, {S(SRD_WQ + 4 * mat)}, s28 offen lds", g, g + 3,
                      after=[m0, so], dist=1, tok_w=["QW%d" % t])
    return prev


def p2_xload(t, q, ks):
    return (f"buffer_load_dwordx4 {vr('a', 96 + (t & 3) * 32 + q * 8 + ks * 4)}, v1, {S(SRD_XN)}, s{44 + q} offen "
            f"offset:{(t & 1) * 2048 + ks * 1024} sc1")


P2_SEQ = [(t, jb) for t in range(7) for jb in range(12)] + [(t, jb) for t in (7, 8, 9) for jb in range(4)] + \
         [(t, jb) for t in (7, 8, 9) for jb in range(4, 12)]


def phase1_iter(a, vwave, tag, last):
    st = Stream()
    done = {}
    for j in range(8):
        for i in range(8):
            k, r = p1_acc(vwave, j, i)
            for ks in range(2):
                w = vr("a", 64 + (j & 1) * 8 + ks * 4)
                c = vr("a", i * 8 + ks * 4)
                x, y = (c, w) if vwave else (w, c)
                n = st.mfma(f"{MF} {vr(k, r)}, {x}, {y}, {vr(k, r)}")
            done[(8 * (i >> 1) + j) if vwave else (4 * i + (j >> 1))] = n
    top = [st.put(f"ds_read_b128 {vr('a', i * 8 + ks * 4)}, v{2 + ks} offset:{i * 2048}", 0, 3)
           for i in (6, 7) for ks in range(2)]
    lastw = None
    for j in range(1, 8):
        for ks in range(2):
            for hf in range(2):
                lastw = st.put(f"ds_read_b64_tr_b16 {vr('a', 64 + (j & 1) * 8 + ks * 4 + hf * 2, 2)}, v4 "
                               f"offset:{j * 32 + hf * 8448 + ks * 512}", 16 * (j - 1) + (4 if j == 1 else 1), 16 * (j - 1) + 8)
    if not last:
        barA = st.put("s_waitcnt lgkmcnt(0)", 12, 12)
        barA = st.put("s_barrier", 13, 13, after=barA)
        tog = [st.put(f"v_xor_b32 v{2 + ks}, 0x8000, v{2 + ks}", 20, 100, after=top) for ks in range(2)]
        wt = st.put("v_add_u32 v4, s37, v4", 106, 109, after=lastw)
        st.put("s_sub_u32 s37, 0, s37", 110, 120, after=wt)
        st.put(f"s_cselect_b32 s{SRD_C + 2}, 2097152, 0", 30, 40, pre="s_cmp_lt_u32 s38, 6")
        prev, g = None, 3
        for mat in range(2):
            for e in range(4):
                m0 = st.put(f"s_add_u32 m0, s35, {mat * P1_WM + e * 1056}", g - 1, g - 1, after=prev)
                so = st.put(f"s_add_u32 s28, s33, {e * 8192}", g, g, after=prev)
                prev = st.put(f"buffer_load_dwordx4 v6, {S(SRD_WK + 4 * mat)}, s28 offen lds", g + 1, g + 2,
                              after=[m0, so], dist=1, tok_w=["W"])
                g += 5
        st.put(f"s_add_u32 s33, s33, {64 * 8192}", g, g + 4, after=prev)
        u = st.put("s_add_u32 s35, s35, s36", g, g + 4, after=prev)
        st.put("s_sub_u32 s36, 0, s36", g + 1, g + 6, after=u)
        g = 52
        for pp in range(8):
            m0 = st.put(f"s_add_u32 m0, s34, {pp * 1024}", g - 1, g - 1, after=[prev, barA])
            so = st.put(f"s_add_u32 s28, s32, {pp * 8192}", g, g, after=prev)
            prev = st.put(f"buffer_load_dwordx4 v5, {S(SRD_C)}, s28 offen lds", g + 1, g + 2, after=[m0, so], dist=1)
            g += 7
        st.put("s_add_u32 s32, s32, 128", g, g + 3, after=prev)
        st.put("s_xor_b32 s34, s34, 0x8000", g, g + 3, after=prev)
        if OPT.get("touch", 1):
            st.put("global_load_dword v10, v[8:9], off", 107, 107, after=prev,
                   pre=f"s_cmp_ge_u32 s38, 5\ns_cbranch_scc1 L_nt_{tag}",
                   post=f"v_add_co_u32 v8, vcc, v8, v7\ns_nop 1\nv_addc_co_u32 v9, vcc, 0, v9, vcc\nL_nt_{tag}:")
        nb = st.put("", 110, 110, tok_r=["W"])
        nb = st.put("s_waitcnt lgkmcnt(0)", 110, 110, after=nb)
        barB = st.put("s_barrier", 111, 111, after=nb)
        st.put(f"L_s1b_{tag}:", 112, 112, after=barB, pre=f"s_cmp_eq_u32 s38, s39\ns_cbranch_scc1 L_s1_{tag}")
        b = Asm()
        b(f"L_s1_{tag}:")
        b(sig_text("s95", SRD_DBG))
        b(f"s_branch L_s1b_{tag}")
        SLOW.append(b)
        for ks in range(2):
            for hf in range(2):
                st.put(f"ds_read_b64_tr_b16 {vr('a', 64 + ks * 4 + hf * 2, 2)}, v4 offset:{hf * 8448 + ks * 512}",
                       113, 120, after=[barB, wt])
        for i in range(6):
            for ks in range(2):
                st.put(f"ds_read_b128 {vr('a', i * 8 + ks * 4)}, v{2 + ks} offset:{i * 2048}", 113 + 2 * i,
                       min(127, 120 + 2 * i), after=[barB] + tog)
        st.put("s_add_u32 s38, s38, 1", 122, 124)
        st.put("s_cmp_lt_u32 s38, 7", 126, 126)
        a(".p2align 3")
        a(f"L_p1_{tag}:")
        over = st.emit(a)
        a(f"s_cbranch_scc1 L_p1_{tag}")
        return over
    pl = f"buffer_load_dword v11, v14, {S(SRD_DBG)}, 0 offen sc1"
    p = st.put("v_lshrrev_b32 v14, 2, v1", -1)
    pld = st.put(pl, 0, 1, after=p)
    p = st.put("v_bfe_u32 v7, v0, 3, 1", 4, 6)
    p = st.put("v_bfe_u32 v8, v0, 4, 2", 4, 7, after=p)
    p = st.put("v_lshlrev_b32 v8, 2, v8", 4, 8, after=p)
    p = st.put("v_add_lshl_u32 v7, v7, v8, 2", 4, 9, after=p)
    p = st.put("v_mul_u32_u24 v7, 0xd80, v7", 4, 10, after=p)
    p = st.put("v_and_b32 v8, 7, v0", 4, 11, after=p)
    pat = st.put("v_lshl_add_u32 v5, v8, 4, v7", 4, 12, after=p)
    ra = st.put("v_subrev_u32 v2, s91, v4", 8, 30, after=top)
    rb = st.put(f"v_add_u32 v3, {P2_SLOT[3]}, v2", 8, 32, after=ra)
    st.put(f"v_add_u32 v4, {P2_SLOT[0]}, v2", 106, 112, after=[lastw, ra])
    prev = p2_dma(st, 0, 2, 34, None)
    for it in st.items[-6:]:
        it.after.append(pat)
        it.lo = max(it.lo, 13)
    cmp_, br, lab = poll_text(pl, "v11", 4, "s1" + tag)
    p = st.put(cmp_, 38, 38, after=pld)
    chk = st.put(lab, 42, 42, after=p, pre=br)
    g = 43
    xl = chk
    for t in range(2):
        for q in range(4):
            for ks in range(2):
                xl = st.put(p2_xload(t, q, ks), g, g + 4, after=xl)
                g += 3 if t == 0 else 4
        if t == 0:
            prev = p2_dma(st, 1, 68, 104, [prev, xl])
    for q in range(4):
        st.put(f"s_add_u32 s{44 + q}, s{44 + q}, 4096", 110, 126, after=xl)
    p = chk
    for m in range(2):
        for k in range(4):
            p = st.put(f"v_accvgpr_read_b32 v7, a{80 + 8 * m + 2 * k}", done[m] + 5, 60 + 24 * m + 4 * k, after=p)
            p = st.put(f"v_accvgpr_read_b32 v14, a{81 + 8 * m + 2 * k}", done[m] + 5, 61 + 24 * m + 4 * k, after=p)
            p = st.put(f"v_cvt_pk_bf16_f32 v{8 + k}, v7, v14", done[m] + 5, 62 + 24 * m + 4 * k, after=p)
        p = st.put(f"buffer_store_dwordx4 v[8:11], v1, {S(SRD_WS)}, s93 offen offset:{m * 1024} sc1", 0, 80 + 24 * m,
                   after=p, dist=1, tok_w=["KVS"])
        p = st.put("s_nop 0", 0, 81 + 24 * m, after=p, dist=1)
    for m in range(2, 32):
        b = pair_base(m)[1]
        p = None
        for k in range(4):
            p = st.put(f"v_cvt_pk_bf16_f32 v{b + k}, v{b + 2 * k}, v{b + 2 * k + 1}", min(done[m] + 5, 127),
                       min(done[m] + 24, 127), after=p)
    nb = st.put("", 108, 108, tok_r=["QW0"])
    bar = st.put("s_barrier", 109, 109, after=nb)
    for R in range(2):
        for k, t in enumerate(p2_wread(R, P2_SEQ)):
            st.put(t, 114 + 2 * R, 122 + 2 * R, after=[bar, rb])
    return st.emit(a, search=True)


Q_SCALE = 0x3e0293ee
V_S, V_P, V_NM, V_L, V_Q, V_ND, V_ONE, V_T = 16, 80, 112, 128, 144, 208, 216, 220
SRD_KV = 12


def a_o(n):
    return 96 + 4 * n if n < 8 else 160 + 4 * (n - 8)


def a_x(f):
    return 4 * f if f < 8 else 128 + 4 * (f - 8)


def a_y(f):
    return 32 + 4 * f


def _qmap():
    free = [("v", 20 + 8 * k) for k in range(30) if not 144 <= 20 + 8 * k < 208] + [("a", 24), ("a", 28)]
    m = {}
    for q in range(4):
        for jb in range(8):
            if jb in (2, 6):
                m[(jb, q)] = ("v", V_Q + (q * 4 + (jb >> 1)) * 4)
    for jb in range(8):
        for q in range(4):
            if (jb, q) not in m:
                m[(jb, q)] = free.pop(-1 if jb == 0 and q < 2 else 0)
    return m


QMAP = _qmap()
KV_FIRST = [(0, "K0"), (0x8000, "KV"), (0x4000, "KV"), (0xc000, "KV"), (0x10000, "KV"), (0x18000, "KV"), (0x14000, "KV")]


def kv_first(a):
    for rel, tok in KV_FIRST:
        a(f"s_add_u32 s28, s34, {rel}")
        a("s_and_b32 m0, s28, 0x1ffff")
        for k in range(4):
            a(f"buffer_load_dwordx4 v1, {S(SRD_KV)}, s28 offen offset:{k * 1024} sc1 lds", tok_w=[tok])


def phase2(a):
    st = Stream()
    seq = P2_SEQ
    first, lastrow, qdone = {}, {}, {}
    for R, (t, jb) in enumerate(seq):
        first.setdefault(t, R)
        lastrow[t] = R
        for q in range(4):
            k, r = ("a", 32 + (q * 2 + (jb >> 1)) * 8 + (jb & 1) * 4) if jb < 4 else QMAP[(jb - 4, q)]
            for ks in range(2):
                c = "0" if t == 0 and ks == 0 else vr(k, r)
                n = st.mfma(f"{MF} {vr(k, r)}, {vr('a', (R % 3) * 8 + ks * 4)}, {vr('a', 96 + (t & 3) * 32 + q * 8 + ks * 4)}, {c}")
            qdone[(jb, q)] = n
    nm = len(st.m)
    bars = {0: None}
    for t in range(1, 10):
        g = 8 * (first[t] - 2) - 1
        nb = st.put("", g - 1, g - 1, tok_r=["QW%d" % t])
        bars[t] = st.put("s_barrier", g, g, after=nb)
    rel5 = st.put("s_barrier", 8 * lastrow[5] + 12, 8 * lastrow[5] + 12)
    lastrd = {}
    for R in range(2, len(seq)):
        for k, t in enumerate(p2_wread(R, seq)):
            lastrd[seq[R][0]] = st.put(t, 8 * (R - 2) + (k >> 1), 8 * (R - 2) + 6, after=bars[seq[R][0]])
    prev = None
    for t in range(2, 10):
        if t < 9:
            lo = max(0, 8 * (first[t - 2] - 2)) + 30
            prev = p2_dma(st, t, lo, lo + (60 if t < 8 else 24), [prev, bars[t - 2]])
        else:
            lo = 8 * lastrow[5] + 48
            prev = p2_dma(st, t, lo, lo + 34, [prev, rel5])
    xl = None
    adv = {}
    for t in range(2, 10):
        g = 96 * (t - 2) + 2 if t < 8 else 96 * 5 + 50 + 60 * (t - 8)
        g = max(g, 8 * lastrow[t - 4] + 8 if t >= 4 else 0)
        for q in range(4):
            for ks in range(2):
                xl = st.put(p2_xload(t, q, ks), g, g + 5, after=[xl, adv.get(q)])
                g += 4
            if t & 1 and t < 9:
                adv[q] = st.put(f"s_add_u32 s{44 + q}, s{44 + q}, 4096", g - 3, g + 10, after=xl)
    span = OPT.get("stspan", 700)
    p = None
    for m in range(2, 32):
        g = 6 + ((m - 2) * span) // 30
        if (m & 3) == 0:
            p = st.put("s_add_u32 s93, s93, 4096", g - 4, g - 1, after=p)
        p = st.put(f"buffer_store_dwordx4 {vr('v', pair_base(m)[1])}, v1, {S(SRD_WS)}, s93 offen offset:{(m & 3) * 1024} sc1",
                   g, g + 6, after=p, tok_w=["KVS"])
    laststore = p
    sc = Asm()
    sc(f"s_lshl_b32 s28, {S_H}, 20")
    sc(f"s_add_u32 s28, s28, {WS_KV}")
    sc(f"s_add_u32 s{SRD_KV}, s{PTR + 22}, s28\ns_addc_u32 s{SRD_KV + 1}, s{PTR + 23}, 0")
    g0 = 26
    glue = "\n".join(i.text for i in sc.ins)
    p = st.put(f"s_and_b32 s{SRD_KV + 1}, s{SRD_KV + 1}, 0xffff", g0, g0, pre=glue.replace("s28", "s29"))
    for txt in (f"s_sub_u32 s{SRD_KV + 2}, 16, {S_I}", f"s_lshl_b32 s{SRD_KV + 2}, s{SRD_KV + 2}, 16",
                f"s_mov_b32 s{SRD_KV + 3}, 0x20000", f"s_lshl_b32 s34, {S_W}, 12", f"s_lshl_b32 s35, {S_H}, 7"):
        p = st.put(txt, g0 + 1, 90, after=p)
    p = st.put(f"s_cselect_b32 s36, s35, {OOB}", g0 + 2, 95, after=p, pre=f"s_cmp_eq_u32 {S_W}, 0")
    p = st.put(f"s_add_u32 s37, {S_HL}, 1", g0 + 2, 100, after=p)
    p = st.put("s_cselect_b32 s37, 0, s37", g0 + 2, 110, after=p, pre="s_cmp_eq_u32 s37, 7")
    p = st.put(f"s_cselect_b32 s37, s37, {S_HL}", g0 + 2, 120, after=p, pre=f"s_cmp_eq_u32 {S_J}, 3")
    p = st.put("s_lshl_b32 s37, s37, 11", g0 + 2, 130, after=p)
    p = st.put(f"s_cselect_b32 s37, {OOB}, s37", g0 + 2, 140, after=p, pre=f"s_cmp_eq_u32 {S_HL}, 7")
    gs = span + OPT.get("sigd", 80)
    nb = st.put("", gs, gs, after=laststore, tok_r=["KVS"])
    bs = st.put("s_barrier", gs + 1, gs + 1, after=nb)
    sg = st.put(sig_text("s36"), gs + 2, gs + 4, after=bs)
    gp = OPT.get("pollg", 880)
    pl = f"buffer_load_dword v11, off, {S(SRD_WS)}, s35 sc1"
    pld = st.put(pl, gp, gp + 2, after=sg)
    cmp_, br, lab = poll_text(pl, "v11", 8, "s2")
    p = st.put(cmp_, gp + 40, gp + 40, after=pld)
    chk = st.put(lab, gp + 44, gp + 44, after=p, pre=br)
    rel8 = st.put("s_barrier", 8 * lastrow[8] + 11, 8 * lastrow[8] + 11)
    p = [chk, rel8]
    g = gp + 46
    for rel, tok in KV_FIRST:
        p = st.put(f"s_add_u32 s28, s34, {rel}", min(g - 1, nm - 1), min(g, nm - 1), after=p)
        p = st.put("s_and_b32 m0, s28, 0x1ffff", min(g - 1, nm - 1), min(g, nm - 1), after=p)
        for k in range(4):
            p = st.put(f"buffer_load_dwordx4 v1, {S(SRD_KV)}, s28 offen offset:{k * 1024} sc1 lds", min(g, nm - 1),
                       min(g + 2, nm - 1), after=p, dist=1, tok_w=[tok])
            g += 4
        if g > nm:
            break
    rest = KV_FIRST[KV_FIRST.index((rel, tok)) + 1:]
    for n in range(32):
        r = a_o(n)
        dead = 8 * lastrow[{96: 8, 160: 6, 192: 7, 224: 0}[r & ~31]] + 8 if r < 224 else 100
        for k in range(4):
            st.put(f"v_accvgpr_write_b32 a{r + k}, 0", dead + 3, nm - 1 if r < 128 else min(nm - 1, dead + 200))
    tail = Asm()
    f0 = 8 * (first[7] + 12) + 5
    budget = [OPT.get("silu_in", 4)]
    p = laststore
    for q in range(4):
        for pr in range(2):
            n = q * 2 + pr
            base = 16 + (n & 1) * 40
            x = [base + 8 * (k >> 2) + (k & 3) for k in range(8)]
            t = [base + 16 + 8 * (k >> 2) + (k & 3) for k in range(8)]
            o = base + 32
            ops = [f"v_accvgpr_read_b32 v{x[k]}, a{32 + n * 8 + k}" for k in range(8)]
            ops += [f"v_mul_f32 v{t[k]}, 0xbfb8aa3b, v{x[k]}" for k in range(8)]
            ops += [f"v_exp_f32 v{t[k]}, v{t[k]}" for k in range(8)]
            ops += [f"v_add_f32 v{t[k]}, 1.0, v{t[k]}" for k in range(8)]
            ops += [f"v_rcp_f32 v{t[k]}, v{t[k]}" for k in range(8)]
            ops += [f"v_mul_f32 v{x[k]}, v{x[k]}, v{t[k]}" for k in range(8)]
            ops += [f"v_cvt_pk_bf16_f32 v{o + k}, v{x[2 * k]}, v{x[2 * k + 1]}" for k in range(4)]
            sto = f"buffer_store_dwordx4 {vr('v', o)}, v1, {S(SRD_WS)}, s30 offen offset:{pr * 1024} sc1"
            adr = f"s_add_u32 s30, s{48 + q}, s37"
            if n < budget[0]:
                for k, op in enumerate(ops):
                    p = st.put(op, f0, nm - 1, after=p)
                p = st.put(sto, f0, nm - 1, after=p, dist=1, pre=adr, tok_w=["H"])
            else:
                for op in ops:
                    tail(op)
                tail(adr)
                tail(sto, tok_w=["H"])
    over = st.emit(a)
    print("p2 overflow", over, "tail", st.tail, file=sys.stderr)
    stamp(a, 7)
    work = Asm()
    for ks in range(4):
        for q in range(4):
            src = []
            for h in range(2):
                k, r = QMAP[(2 * ks + h, q)]
                if k == "a":
                    for e in range(4):
                        work(f"v_accvgpr_read_b32 v{8 + e}, a{r + e}")
                    r = 8
                for e in (0, 2):
                    work(f"v_pk_mul_f32 v[{r + e}:{r + e + 1}], v[{r + e}:{r + e + 1}], s[0:1]")
                src += [r, r + 2]
            for e in range(4):
                work(f"v_cvt_pk_bf16_f32 v{V_Q + (q * 4 + ks) * 4 + e}, v{src[e]}, v{src[e] + 1}")
    a(f"s_mov_b32 s0, {hex(Q_SCALE)}\ns_mov_b32 s1, {hex(Q_SCALE)}")
    w = list(tail.ins) + list(work.ins)
    for rel, tok in rest:
        a(f"s_add_u32 s28, s34, {rel}")
        a("s_and_b32 m0, s28, 0x1ffff")
        for k in range(4):
            for _ in range(10):
                a.add(w.pop(0))
            a(f"buffer_load_dwordx4 v1, {S(SRD_KV)}, s28 offen offset:{k * 1024} sc1 lds", tok_w=[tok])
    for i in w:
        a.add(i)


LDS_FLAG = 163832
S_MASK = 88
SRD_W2, SRD_WO, SRD_CUR, SRD_AA = 16, 20, 24, 40
P4_ST = 20480
V4_RD, V4_DM = 244, 248
P4_A = [[64, 68, 72, 76], [120, 124, 136, 140], [16, 20, 24, 28], [32, 36, 40, 44]]
P4_ACC = 144


P4_SEL = [("s_cmp_lt_u32 s97, 7\n"
           f"s_cselect_b64 s[{SRD_CUR}:{SRD_CUR + 1}], s[{SRD_W2}:{SRD_W2 + 1}], s[{SRD_WO}:{SRD_WO + 1}]", None),
          (f"s_cmp_lt_u32 s97, 7\ns_cselect_b32 s{SRD_CUR + 2}, s{SRD_W2 + 2}, s{SRD_WO + 2}", None),
          ("s_cmp_lt_u32 s97, 7\ns_cselect_b32 s31, s44, s45", None),
          (f"s_cmp_lt_u32 s97, 23\ns_cselect_b32 s{SRD_CUR + 2}, s{SRD_CUR + 2}, 0", None)]


def p4_dma(tok, early=False):
    out = [("s_mov_b32 m0, s96", None)]
    for p in range(5):
        if p == 4:
            out.append(("s_add_u32 m0, s96, 4096", None))
        src = f"{S(SRD_W2)}, s44" if early else f"{S(SRD_CUR)}, s31"
        out.append((f"buffer_load_dwordx4 v{V4_DM + p}, {src} offen offset:{1024 * p if p < 4 else 0} lds", tok))
    out += [(f"s_add_u32 s96, s96, {P4_ST}", None), ("s_add_u32 s44, s44, 81920", None)]
    if early:
        return out
    out += [("s_cmp_ge_u32 s96, s1\ns_cselect_b32 s96, s0, s96", None),
            ("s_add_u32 s45, s45, 81920", None), ("s_add_u32 s97, s97, 1", None)]
    return out + P4_SEL


def p4_aload(t):
    out = []
    for r in range(2):
        for ks in range(2):
            out.append(f"buffer_load_dwordx4 {vr('v', P4_A[t & 3][r * 2 + ks])}, v1, {S(SRD_AA)}, s{46 + r} offen offset:{ks * 1024} sc1")
        out.append(f"s_add_u32 s{46 + r}, s{46 + r}, 2048")
    return out


def chain(st, items, lo, hi, after, tail=None):
    ismem = lambda t: t.startswith("buffer") or t.startswith("global")
    nv = sum(1 for t, _ in items if ismem(t))
    k, p, lastmem = 0, after, None
    for t, tok in items:
        g = lo + (k * (hi - lo)) // max(nv, 1)
        gp = lo + ((k - 1) * (hi - lo)) // max(nv, 1) + 1 if k else lo - 2
        ls = t.split("\n")
        if ismem(t):
            p = lastmem = st.put(t, g, g + 2, after=p, dist=1, tok_w=[tok] if tok else ())
            k += 1
        else:
            p = st.put(ls[-1], gp, tail if k == nv and tail else max(gp, g - 1), after=p, pre="\n".join(ls[:-1]) or None)
    return lastmem, nv


def att_step(a, mode, groups, final=False, label=None):
    st = Stream()
    single = mode == "single"
    kbuf = [a_x, a_y]
    vbuf = [a_x, a_y] if single else [a_y]
    cend, kdead = {}, {}
    for g, (q, t, nkb, diag) in enumerate(groups):
        for kb in range(nkb):
            s = vr("v", V_S + (g * 4 + kb) * 4)
            c = vr("v", V_ND + (q & 1) * 4) if diag and kb == nkb - 1 else vr("v", V_NM + q * 4)
            for ks in range(4):
                n = st.mfma(f"{MF} {s}, {vr('a', kbuf[t](kb * 4 + ks))}, {vr('v', V_Q + (q * 4 + ks) * 4)}, "
                            f"{c if ks == 0 else s}")
                kdead[(t, kb * 4 + ks)] = n
            cend[(g, kb)] = n
    nqk = len(st.m)
    pstart, vfirst, vdead = {}, {}, {}
    for g, (q, t, nkb, diag) in enumerate(groups):
        nks = (nkb + 1) // 2
        l = vr("v", V_L + q * 4)
        for db in range(8):
            o = vr("a", a_o(q * 8 + db))
            for ks in range(nks):
                n = st.mfma(f"{MF} {o}, {vr('a', vbuf[t](db * 2 + ks))}, {vr('v', V_P + (g * 2 + ks) * 4)}, {o}")
                pstart.setdefault((g, ks), n)
                vfirst.setdefault((t, db * 2 + ks), n)
                vdead[(t, db * 2 + ks)] = n
        for ks in range(nks):
            st.mfma(f"{MF} {l}, {vr('v', V_ONE)}, {vr('v', V_P + (g * 2 + ks) * 4)}, {l}")
    nm = len(st.m)
    for g, (q, t, nkb, diag) in enumerate(groups):
        for kb in range(nkb):
            dl = pstart[(g, kb >> 1)] - 2
            s = V_S + (g * 4 + kb) * 4
            ex = [st.put(f"v_exp_f32 v{s + r}, v{s + r}", cend[(g, kb)] + 5, dl - 1) for r in range(4)]
            for h in range(2):
                st.put(f"v_cvt_pk_bf16_f32 v{V_P + (g * 2 + (kb >> 1)) * 4 + (kb & 1) * 2 + h}, v{s + 2 * h}, v{s + 2 * h + 1}",
                       cend[(g, kb)] + 6, dl, after=ex[2 * h:2 * h + 2], dist=1)
        if nkb & 1:
            for h in range(2):
                st.put(f"v_mov_b32 v{V_P + (g * 2 + (nkb >> 1)) * 4 + 2 + h}, 0", 0, pstart[(g, nkb >> 1)] - 2)

    def half(g0, reads, last_gap, vm=16, extra=None, toks=()):
        w = st.put("", g0, g0, tok_r=toks) if toks else None
        w = st.put("s_waitcnt vmcnt(%d) lgkmcnt(0)" % vm, g0, g0, after=w)
        gb = g0 + 1 if g0 >= 0 else g0
        bar = st.put("s_barrier", gb, gb, after=w)
        its = [st.put(t, max(lo, g0 + 1), max(hi, g0 + 2), after=[bar] + list(aft)) for t, lo, hi, aft in reads]
        if extra is None:
            extra = [("s_add_u32 s28, s32, 0x8000", None), ("s_and_b32 m0, s28, 0x1ffff", None)]
            for k in range(8):
                if k == 4:
                    extra.append(("s_and_b32 m0, s33, 0x1ffff", None))
                extra.append((f"buffer_load_dwordx4 v1, {S(SRD_KV)}, {'s28' if k < 4 else 's33'} offen offset:{(k & 3) * 1024} sc1 lds", None))
            extra += [("s_mov_b32 s32, s33", None), ("s_add_u32 s33, s33, s36", None), ("s_xor_b32 s36, s36, 0x8000", None)]
        _, nv = chain(st, extra, g0 + 4, last_gap - 4, bar)
        return its, nv

    def vreads(t, reg, off):
        out = []
        for db in range(8):
            for ks in range(2):
                f = db * 2 + ks
                if (t, f) not in vfirst:
                    continue
                lo = kdead.get((t, f), -1) + 1 if single else 0
                out.append((f"ds_read_b128 {vr('a', vbuf[t](f))}, {reg} offset:{off + (ks * 8 + db) * 1024}",
                            lo, vfirst[(t, f)] - 7, ()))
        return out

    def kreads(buf, reg, off, dead, hi, aft=(), only=None):
        return [(f"ds_read_b128 {vr('a', buf(f))}, {reg} offset:{off + f * 1024}", dead(f) + 1, hi(f), aft)
                for f in range(16) if only is None or f in only]

    if single:
        need_b = {f for (t, f) in kdead if t == 1}
        firstb = {}
        n = 0
        for g, (q, t, nkb, diag) in enumerate(groups):
            for f in range(nkb * 4):
                if t == 1:
                    firstb.setdefault(f, n)
                n += 1
        r0 = kreads(a_y, "v2", 0x4000, lambda f: -1, lambda f: firstb[f] - 7, only=need_b) + vreads(0, "v2", 0x8000)
        r1 = vreads(1, "v2", 0xc000)
        if final:
            pl = f"buffer_load_dword v11, off, {S(SRD_WS)}, s35 sc1"
            pld = st.put(pl, -1)
            _, nv = half(-1, r0, nqk, extra=p4_dma("OW0", True), vm=17)
            cmp_, br, lab = poll_text(pl, "v11", 8, "s3h%d" % final)
            p = st.put(cmp_, nqk - 6, nqk - 6, after=pld)
            st.put(lab, nqk - 2, nqk - 2, after=p, pre=br)
            e1 = [("global_load_dword v10, v9, s[52:53]", None)] if OPT.get("touch4", 1) else []
            e1 += [(t, None) for t in p4_aload(0)] + p4_dma("OW1", True)
            half(nqk - 1, r1, nm + 2, vm=9 + nv, extra=e1)
        else:
            half(0, r0, nqk)
            x = st.put("v_xor_b32 v3, 0x10000, v2", 0, nqk)
            r1 += kreads(a_x, "v3", 0, lambda f: vdead[(0, f)], lambda f: nm - 12 + (f >> 2) * 2, aft=[x])
            its, _ = half(nqk - 1, r1, nm)
            st.put("v_mov_b32 v2, v3", nm - 3, nm - 1, after=its + [x])
    else:
        voff = 0xc000 if mode == "dualB" else 0x8000
        dead = lambda f: kdead.get((0, f), -1)
        hi = lambda f: nm - 12 + (f >> 2) * 2
        if mode == "dualA":
            half(0, vreads(0, "v2", voff) + kreads(a_x, "v2", 0x4000, dead, hi), nm)
        elif mode == "dualB":
            x = st.put("v_xor_b32 v3, 0x10000, v2", 0, nqk - 20)
            its, _ = half(0, vreads(0, "v2", voff) + kreads(a_x, "v3", 0, dead, hi, aft=[x]), nm, toks=["H"])
            st.put("v_mov_b32 v2, v3", nm - 3, nm - 1, after=its + [x])
        else:
            its, _ = half(0, vreads(0, "v2", voff) + kreads(a_x, "v3", 0, dead, hi), nm)
            p = st.put("v_mov_b32 v2, v3", nm - 4, nm - 3, after=its)
            p = st.put("v_add_u32 v3, s37, v3", nm - 4, nm - 2, after=p)
            st.put("v_and_b32 v3, 0x1ffff, v3", nm - 4, nm - 1, after=p)
            st.put("s_xor_b32 s37, s37, 0x8000", nm - 2, nm - 2, after=p)
    if label:
        st.put("s_sub_u32 s35, s35, 1", nm - 8, nm - 6)
        a(".p2align 3")
        a(label + ":")
    over = st.emit(a, search=True)
    return over, nm


def att_diag_bias(a, q0):
    a(f"v_mov_b32 v{V_T}, 0xf149f2ca")
    for h in range(2):
        for r in range(4):
            a(f"v_cndmask_b32 v{V_ND + h * 4 + r}, v{V_T}, v{V_NM + (q0 + h) * 4}, s[{S_MASK + 2 * r}:{S_MASK + 2 * r + 1}]")


def att_check(a, q0):
    for q in (q0, q0 + 1):
        l = V_L + q * 4
        a(f"v_cmp_nlt_f32 vcc, 0x21800000, v{l}")
        a(f"v_cmp_ngt_f32 s[28:29], v{V_T + 1}, v{l}")
        a(f"v_rcp_f32 v{l}, v{l}")
        a("s_or_b64 s[62:63], s[62:63], vcc")
        a("s_or_b64 s[62:63], s[62:63], s[28:29]")


def att_finish(a, q0, mix=()):
    mix = list(mix)
    held = []
    a(f"s_lshl_b32 s29, {S_HL}, 12")
    a(f"s_add_u32 s29, s29, {14 * 1024}")
    for q in (q0, q0 + 1):
        l = V_L + q * 4
        a(f"s_add_u32 s30, s{48 + q}, s29")
        for dp in range(4):
            x = V_T + (dp & 1) * 12
            for k in range(8):
                a(f"v_accvgpr_read_b32 v{x + k}, a{a_o(q * 8 + dp * 2) + k}")
                while mix and k in (0, 4):
                    t, tok = mix.pop(0)
                    a(t, tok_w=[tok] if tok else ())
                    if t.startswith("buffer"):
                        break
            for k in range(0, 8, 2):
                a(f"v_pk_mul_f32 v[{x + k}:{x + k + 1}], v[{x + k}:{x + k + 1}], v[{l}:{l + 1}] op_sel_hi:[1,0]")
            for k in range(4):
                a(f"v_cvt_pk_bf16_f32 v{x + 8 + k}, v{x + 2 * k}, v{x + 2 * k + 1}")
            a(f"buffer_store_dwordx4 {vr('v', x + 8)}, v1, {S(SRD_WS)}, s30 offen offset:{dp * 1024} sc1", tok_w=["CTX"])
    for t, tok in mix:
        a(t, tok_w=[tok] if tok else ())


def rowmax_to_negm(a, src):
    for sw in ("v_permlane16_swap_b32", "v_permlane32_swap_b32"):
        for q in range(4):
            a(f"v_mov_b32 v{V_T + q}, v{src(q)}")
        for q in range(4):
            a(f"{sw} v{src(q)}, v{V_T + q}")
        for q in range(4):
            a(f"v_max_f32 v{src(q)}, v{src(q)}, v{V_T + q}")
    for q in range(4):
        for r in range(4):
            a(f"v_sub_f32 v{V_NM + q * 4 + r}, 0, v{src(q)}")


def p4_scalars(a):
    a(f"s_sub_u32 s28, 15, {S_I}")
    a(f"s_bitcmp1_b32 {S_HL}, 0 ;scc")
    a(f"s_cselect_b32 s29, s28, {S_I}")
    a("s_lshl_b32 s29, s29, 3")
    a(f"s_lshl_b32 s30, {S_W}, 1")
    a("s_add_u32 s29, s29, s30")
    a(f"s_mul_i32 s29, s29, {A_RB}")
    a(f"s_mul_i32 s30, {S_J}, {46 * 1024}")
    a("s_add_u32 s29, s29, s30")
    a(f"s_add_u32 s46, s29, {WS_A}")
    a(f"s_add_u32 s47, s46, {A_RB}")
    a(f"s_mul_i32 s29, {S_W}, {16 * 1280}")
    a(f"s_lshr_b32 s30, {S_HL}, 1")
    a("s_mul_i32 s30, s30, 320")
    a("s_add_u32 s29, s29, s30")
    a(f"s_mul_i32 s30, {S_J}, 7")
    a("s_min_u32 s30, s30, 20")
    a("s_mul_i32 s30, s30, 81920")
    a("s_add_u32 s44, s29, s30")
    a(f"s_mul_i32 s30, {S_J}, {16 * 81920}")
    a("s_add_u32 s45, s29, s30")
    a(f"s_sub_u32 s45, s45, {4 * 81920}")
    a("s_mov_b32 s97, 3")
    a(f"s_mul_i32 s0, {S_W}, 5120")
    a(f"s_add_u32 s1, s0, {8 * P4_ST}")
    a("s_bitcmp1_b32 s28, 0 ;scc")
    a(f"s_cselect_b32 s29, 0, {4 * P4_ST}")
    a("s_add_u32 s96, s0, s29")
    a(f"s_mov_b32 s{SRD_AA + 2}, {WS_SIZE}")


def touch_job(a):
    if OPT.get("touch4", 1):
        a("global_load_dword v10, v9, s[52:53]")
    for k in range(4):
        a(f"s_mov_b64 s[{52 + 2 * k}:{53 + 2 * k}], s[{54 + 2 * k}:{55 + 2 * k}]")
    a("s_sub_u32 s39, s39, 1")


def phase3(a):
    info = []
    a("s_mov_b32 s38, 0")
    a("v_bfe_u32 v7, v0, 4, 2")
    a("v_and_b32 v8, 15, v0")
    a("v_lshlrev_b32 v7, 2, v7")
    for r in range(4):
        a(f"v_add_u32 v9, {r}, v7")
        a(f"v_cmp_le_u32 s[{S_MASK + 2 * r}:{S_MASK + 2 * r + 1}], v9, v8")
    for r in range(4):
        a(f"v_mov_b32 v{V_ONE + r}, 0x3f803f80")
    a("v_and_b32 v11, 63, v0")
    for p in range(5):
        a(f"v_add_u32 v7, {64 * p}, v11")
        a("v_mul_u32_u24 v8, 0xccd, v7")
        a("v_lshrrev_b32 v8, 16, v8")
        a("v_mul_u32_u24 v14, 20, v8")
        a("v_sub_u32 v7, v7, v14")
        a("v_bfe_u32 v14, v8, 2, 1")
        a("v_lshlrev_b32 v14, 1, v14")
        a("v_xor_b32 v7, v7, v14")
        a("v_mul_u32_u24 v8, 0x500, v8")
        a("v_lshl_add_u32 v7, v7, 4, v8")
        a(f"v_subrev_u32 v{V4_DM + p}, {1024 * p if p < 4 else 0}, v7")
    a("v_lshlrev_b32 v9, 3, v1")
    srd(a, SRD_W2, 8, 2211840)
    srd(a, SRD_WO, 5, 5242880)
    srd(a, SRD_AA, 11, WS_SIZE)
    a(f"s_mov_b32 s{SRD_CUR + 3}, 0x20000")
    a("s_lshr_b32 s28, s2, 3")
    a("s_lshl_b32 s28, s28, 2")
    a(f"s_add_u32 s28, s28, {S_W}")
    a(f"s_mul_i32 s29, {S_J}, 7")
    a("s_min_u32 s29, s29, 20")
    a("s_mul_i32 s29, s29, 81920")
    a("s_mul_i32 s30, s28, 4480")
    a("s_min_u32 s30, s30, 565248")
    a("s_add_u32 s29, s29, s30")
    a(f"s_add_u32 s52, s{PTR + 16}, s29\ns_addc_u32 s53, s{PTR + 17}, 0")
    a(f"s_mul_i32 s29, {S_J}, {16 * 81920}")
    a("s_mul_i32 s30, s28, 10240")
    a("s_add_u32 s29, s29, s30")
    a(f"s_add_u32 s56, s{PTR + 10}, s29\ns_addc_u32 s57, s{PTR + 11}, 0")
    a("s_add_u32 s58, s56, 2048\ns_addc_u32 s59, s57, 0")
    a(f"s_lshr_b32 s28, {S_W}, 1")
    a(f"s_lshl_b32 s29, {S_HL}, 1")
    a("s_add_u32 s28, s28, s29")
    a("s_and_b32 s29, s28, 7")
    a(f"s_sub_u32 s30, 15, {S_I}")
    a("s_cmp_ge_u32 s28, 8")
    a(f"s_cselect_b32 s30, s30, {S_I}")
    a("s_lshl_b32 s30, s30, 3")
    a("s_add_u32 s29, s29, s30")
    a(f"s_mul_i32 s29, s29, {A_RB}")
    a(f"s_mul_i32 s30, {S_J}, {46 * 1024}")
    a("s_add_u32 s29, s29, s30")
    a(f"s_and_b32 s30, {S_W}, 1")
    a("s_mul_i32 s30, s30, 6144")
    a("s_add_u32 s29, s29, s30")
    a(f"s_add_u32 s29, s29, {WS_A}")
    a(f"s_add_u32 s60, s{PTR + 22}, s29\ns_addc_u32 s61, s{PTR + 23}, 0")
    a("s_mov_b64 s[54:55], s[56:57]\ns_mov_b64 s[56:57], s[58:59]\ns_mov_b64 s[58:59], s[60:61]")
    a("L_att:")
    a("s_mov_b32 s39, 3")
    a(f"v_mov_b32 v7, {LDS_FLAG}")
    a("v_mov_b32 v8, 0")
    a("ds_write_b32 v7, v8")
    a("s_mov_b64 s[62:63], 0")
    a("s_add_u32 s32, s34, 0x14000")
    a("s_add_u32 s33, s34, 0x20000")
    a("s_mov_b32 s36, 0x4000")
    a("s_mov_b32 s37, 0xc000")
    a("v_mov_b32 v2, v1")
    a("v_add_u32 v3, 0x4000, v1")
    for r in range(16):
        a(f"v_mov_b32 v{V_L + r}, 0")
    stamp(a, 8)
    a.need("K0")
    a("s_barrier")
    stamp(a, 9)
    for f in range(16):
        a(f"ds_read_b128 {vr('a', a_x(f))}, v2 offset:{f * 1024}")
    a("s_cmp_lg_u32 s38, 0")
    a("s_cbranch_scc1 L_att_go")
    for q in range(4):
        for ks in range(4):
            s = vr("v", V_S + q * 4)
            a(f"{MF} {s}, {vr('a', a_x(ks))}, {vr('v', V_Q + (q * 4 + ks) * 4)}, {'0' if ks == 0 else s}")
    for q in range(4):
        s = V_S + q * 4
        a(f"v_max3_f32 v{s}, v{s}, v{s + 1}, v{s + 2}")
        a(f"v_max_f32 v{s}, v{s}, v{s + 3}")
    rowmax_to_negm(a, lambda q: V_S + q * 4)
    a("L_att_go:")
    att_diag_bias(a, 2)
    stamp(a, 10)
    full = lambda q, t=0: (q, t, 4, False)
    a(f"s_lshl_b32 s35, {S_I}, 1")
    a("s_cmp_eq_u32 s35, 0")
    a("s_cbranch_scc1 L_att_d")
    info.append(att_step(a, "dual", [full(0), full(1), full(2), full(3)], label="L_att_dual"))
    a("s_cmp_lg_u32 s35, 0")
    a("s_cbranch_scc1 L_att_dual")
    a("L_att_d:")
    stamp(a, 11)
    for w in range(4):
        if w < 3:
            a(f"s_cmp_lg_u32 {S_W}, {w}")
            a(f"s_cbranch_scc1 L_att_d{w + 1}")
        info.append(att_step(a, "dualA", [full(0), full(3), (2, 0, w + 1, True), full(1)]))
        info.append(att_step(a, "dualB", [full(0), (3, 0, 4 - w, True), full(1)]))
        if w < 3:
            a("s_branch L_att_dd")
            a(f"L_att_d{w + 1}:")
    a("L_att_dd:")
    stamp(a, 12)
    a(f"s_lshl_b32 s28, {S_J}, 3")
    a(f"s_add_u32 s28, s28, {S_I}")
    a(f"s_add_u32 s28, s28, {C_H}")
    sig_off(a, "s29", "s28")
    a("s_cmp_eq_u32 s38, 0")
    a(f"s_cselect_b32 s29, s29, {OOB}")
    a(sig_text("s29"))
    a(f"v_mov_b32 v{V_T + 1}, 0x5d800000")
    att_check(a, 2)
    att_finish(a, 2)
    att_diag_bias(a, 0)
    p4_scalars(a)
    stamp(a, 13)
    a(f"s_lshl_b32 s35, {S_I}, 1")
    a("s_sub_u32 s35, 14, s35")
    a("L_att_j:")
    a("s_cmp_le_u32 s39, s35")
    a("s_cbranch_scc1 L_att_jx")
    touch_job(a)
    a("s_branch L_att_j")
    a("L_att_jx:")
    a("s_cmp_eq_u32 s35, 0")
    a("s_cbranch_scc1 L_att_e")
    info.append(att_step(a, "single", [full(0), full(1), full(0, 1), full(1, 1)], label="L_att_single"))
    a("s_cmp_ge_u32 s35, s39")
    a("s_cbranch_scc1 L_att_single")
    touch_job(a)
    a("s_cmp_lg_u32 s35, 0")
    a("s_cbranch_scc1 L_att_single")
    a("L_att_e:")
    stamp(a, 14)
    a(f"s_lshl_b32 s28, {S_J}, 3")
    a(f"s_add_u32 s28, s28, {S_I}")
    a(f"s_add_u32 s28, s28, {C_H}")
    a("s_lshl_b32 s35, s28, 7")
    for w in range(4):
        if w < 3:
            a(f"s_cmp_lg_u32 {S_W}, {w}")
            a(f"s_cbranch_scc1 L_att_e{w + 1}")
        info.append(att_step(a, "single", [full(1), (0, 0, w + 1, True), (1, 1, 4 - w, True)], final=w + 1))
        if w < 3:
            a("s_branch L_att_ee")
            a(f"L_att_e{w + 1}:")
    a("L_att_ee:")
    stamp(a, 15)
    a(f"v_mov_b32 v{V_T + 1}, 0x5d800000")
    att_check(a, 0)
    a("s_cmp_lg_u64 s[62:63], 0")
    a("s_cselect_b32 s28, 1, 0")
    a(f"v_mov_b32 v7, {LDS_FLAG}")
    a("v_mov_b32 v8, s28")
    a("ds_or_b32 v7, v8")
    mix = [(t, None) for t in p4_aload(1)] + p4_dma("OW2", True) + [(t, None) for t in p4_aload(2)] + P4_SEL
    att_finish(a, 0, mix)
    a.need("OW0")
    a("s_waitcnt lgkmcnt(0)")
    a("s_barrier")
    a("ds_read_b32 v8, v7")
    a("v_bfe_u32 v11, v0, 2, 4")
    a("v_mul_u32_u24 v11, 0x140, v11")
    a("v_and_b32 v14, 3, v0")
    a("v_lshl_add_u32 v11, v14, 3, v11")
    a(f"s_bitcmp1_b32 {S_I}, 0 ;scc")
    a(f"s_mov_b32 s33, {4 * P4_ST}")
    a("s_cselect_b32 s28, s33, 0")
    a(f"s_cselect_b32 s33, {-4 * P4_ST & 0xffffffff}, s33")
    a("v_add_u32 v11, s28, v11")
    a("v_bfe_u32 v14, v0, 4, 1")
    a("v_lshlrev_b32 v14, 5, v14")
    a(f"v_add_u32 v{V4_RD}, v11, v14")
    a("v_xor_b32 v14, 32, v14")
    a(f"v_add_u32 v{V4_RD + 1}, v11, v14")
    a(f"v_add_u32 v{V4_RD + 2}, {2 * P4_ST}, v{V4_RD}")
    a(f"v_add_u32 v{V4_RD + 3}, {2 * P4_ST}, v{V4_RD + 1}")
    a("v_readfirstlane_b32 s28, v8")
    a("s_cmp_gt_u32 s28, s38")
    a("s_cbranch_scc1 L_att_redo")
    b = Asm()
    b("L_att_redo:")
    b("s_mov_b32 s38, 1")
    rowblocks(b, 44, 16, 0)
    b("v_and_b32 v8, 15, v0")
    b("v_bfe_u32 v7, v0, 4, 2")
    b("v_lshlrev_b32 v7, 2, v7")
    for q in range(4):
        b(f"v_add_u32 v{V_P + q}, s{44 + q}, v8")
        b(f"v_mov_b32 v{V_P + 4 + q}, 0xf149f2ca")
    b(f"s_sub_u32 s35, 16, {S_I}")
    b("s_lshl_b32 s35, s35, 3")
    b("s_mov_b32 s39, 0")
    b("L_att_max:")
    b("s_lshr_b32 s28, s39, 3")
    b("s_lshl_b32 s28, s28, 16")
    b("s_and_b32 s29, s39, 7")
    b("s_lshl_b32 s29, s29, 12")
    b("s_add_u32 s28, s28, s29")
    for ks in range(4):
        b(f"buffer_load_dwordx4 {vr('a', a_x(ks))}, v1, {S(SRD_KV)}, s28 offen offset:{ks * 1024} sc1")
    b("s_waitcnt vmcnt(0)")
    for q in range(4):
        for ks in range(4):
            s = vr("v", V_S + q * 4)
            b(f"{MF} {s}, {vr('a', a_x(ks))}, {vr('v', V_Q + (q * 4 + ks) * 4)}, {'0' if ks == 0 else s}")
    for r in range(4):
        b(f"v_add_u32 v14, {r}, v7")
        for q in range(4):
            b(f"v_cmp_le_u32 vcc, v14, v{V_P + q}")
            b(f"v_max_f32 v10, v{V_P + 4 + q}, v{V_S + q * 4 + r}")
            b(f"v_cndmask_b32 v{V_P + 4 + q}, v{V_P + 4 + q}, v10, vcc")
    b("v_add_u32 v7, 16, v7")
    b("s_add_u32 s39, s39, 1")
    b("s_cmp_lt_u32 s39, s35")
    b("s_cbranch_scc1 L_att_max")
    rowmax_to_negm(b, lambda q: V_P + 4 + q)
    for n in range(32):
        for k in range(4):
            b(f"v_accvgpr_write_b32 a{a_o(n) + k}, 0")
    b("s_barrier")
    kv_first(b)
    b("s_branch L_att")
    SLOW.append(b)
    print("attention steps (overflow slots, mfmas):", info, file=sys.stderr)


def p4_acc(cb, r):
    return P4_ACC + (r * 10 + cb) * 4


def p4_wread(sub, cb, ks, hf):
    reg = V4_RD + (cb & 1) + (2 if sub >= 2 else 0)
    off = (sub & 1) * P4_ST + ks * 10240 + hf * 5120 + (cb >> 1) * 64
    return f"ds_read_b64_tr_b16 {vr('a', (cb % 5) * 8 + ks * 4 + hf * 2, 2)}, v{reg} offset:{off}"


def phase4(a):
    for cb in range(3):
        for ks in range(2):
            for hf in range(2):
                a(p4_wread(0, cb, ks, hf))
    a(f"s_lshl_b32 s28, {S_J}, 3")
    a(f"s_add_u32 s28, s28, {S_I}")
    a(f"s_add_u32 s28, s28, {C_CTX}")
    a("s_lshl_b32 s35, s28, 7")
    sig_off(a, "s36", "s28")
    a(f"s_lshl_b32 s29, {S_HL}, 12")
    a(f"s_add_u32 s29, s29, {14 * 1024}")
    a("s_sub_u32 s30, s49, s48")
    a("s_sub_u32 s30, s30, 4096")
    a("v_mov_b32 v14, s30")
    a("v_cmp_lt_u32 vcc, 0xf80, v9")
    a("s_add_u32 s37, s48, s29")
    a("v_cndmask_b32 v14, 0, v14, vcc")
    a("v_add_u32 v9, v9, v14")
    for r in range(P4_ACC, P4_ACC + 80):
        a(f"v_mov_b32 v{r}, 0")
    a("s_mov_b32 s32, 0")
    stamp(a, 16)
    a(".p2align 3")
    a("L_p4:")
    over = 0
    pl = f"buffer_load_dword v11, off, {S(SRD_WS)}, s35 sc1"
    for sub in range(4):
        st = Stream()
        for cb in range(10):
            for r in range(2):
                c = vr("v", p4_acc(cb, r))
                for ks in range(2):
                    st.mfma(f"{MF} {c}, {vr('a', (cb % 5) * 8 + ks * 4)}, {vr('v', P4_A[sub][r * 2 + ks])}, {c}")
        last = None
        for cb in range(3, 10):
            for k in range(4):
                last = st.put(p4_wread(sub, cb, k >> 1, k & 1), 4 * (cb - 3) + k, 4 * (cb - 3) + k + 1)
        nb = st.put("", 26, 26, tok_r=["OW%d" % ((sub + 1) & 3)] + (["CTX"] if sub == 2 else []))
        bar = st.put("s_barrier", 27, 27, after=nb)
        tog = []
        if sub == 3:
            tog = [st.put(f"v_add_u32 v{V4_RD + k}, s33, v{V4_RD + k}", 2 + 2 * k, 12) for k in range(2)]
            tog2 = [st.put(f"v_add_u32 v{V4_RD + 2 + k}, s33, v{V4_RD + 2 + k}", 30, 36, after=last) for k in range(2)]
            st.put("s_sub_u32 s33, 0, s33", 37, 38, after=tog2)
        for cb in range(3):
            for k in range(4):
                st.put(p4_wread((sub + 1) & 3, cb, k >> 1, k & 1), 28 + 4 * cb + k, min(39, 29 + 4 * cb + k), after=[bar] + tog)
        p, _ = chain(st, p4_dma("OW%d" % ((sub + 3) & 3)), 2, 22, None, tail=36)
        if sub == 2:
            st.put("L_c2b:", 28, 28, after=bar, pre="s_cmp_eq_u32 s32, 2\ns_cbranch_scc1 L_c2")
            b = Asm()
            b("L_c2:")
            b(sig_text("s36"))
            if OPT.get("touch4", 1):
                b(f"buffer_load_dword v10, v9, {S(SRD_WS)}, s37 offen")
            b("s_branch L_c2b")
            SLOW.append(b)
        if sub == 0:
            p = st.put("L_c0b:", 21, 21, after=p, pre="s_cmp_eq_u32 s32, 4\ns_cbranch_scc1 L_c0")
            b = Asm()
            b("L_c0:")
            cmp_, br, lab = poll_text(pl, "v11", 8, "s3c")
            b(cmp_)
            b(br)
            b(lab)
            b("s_branch L_c0b")
            SLOW.append(b)
        if sub == 3:
            p = st.put("L_c3b:", 21, 21, after=p, pre="s_cmp_eq_u32 s32, 3\ns_cbranch_scc1 L_c3")
            b = Asm()
            b("L_c3:")
            b(pl)
            b("s_branch L_c3b")
            SLOW.append(b)
        c = st.put(f"s_cselect_b32 s{SRD_AA + 2}, {WS_SIZE}, 0", 18, 20, pre="s_cmp_lt_u32 s32, 20")
        chain(st, [(t, None) for t in p4_aload(sub + 3)], 23, 39, [p, c])
        st.put("s_add_u32 s32, s32, 1", 37, 38)
        over += st.emit(a)
        a("s_cmp_lt_u32 s32, 23")
        a("s_cbranch_scc0 L_p4_x" if sub < 3 else "s_cbranch_scc1 L_p4")
    a("L_p4_x:")
    print("p4 overflow", over, file=sys.stderr)
    stamp(a, 17)
    srd(a, 16, 0, 2621440)
    srd(a, 20, 9, 2621440)
    a("v_and_b32 v2, 15, v0")
    a("v_mul_u32_u24 v2, 0x500, v2")
    a("v_bfe_u32 v3, v0, 4, 2")
    a("v_lshl_add_u32 v2, v3, 3, v2")
    a("v_lshrrev_b32 v3, 1, v1")
    a(f"s_sub_u32 s28, 15, {S_I}")
    a(f"s_bitcmp1_b32 {S_HL}, 0 ;scc")
    a(f"s_cselect_b32 s34, s28, {S_I}")
    a(f"s_lshr_b32 s35, {S_HL}, 1")
    a("s_lshl_b32 s28, s34, 3")
    a(f"s_lshl_b32 s29, {S_W}, 1")
    a("s_add_u32 s28, s28, s29")
    a(f"s_and_b32 s29, {S_J}, 1")
    a("s_add_u32 s28, s28, s29")
    a(f"s_mul_i32 s32, s28, {16 * 1280}")
    a("s_mul_i32 s28, s35, 320")
    a("s_add_u32 s32, s32, s28")
    a(f"s_lshr_b32 s28, {S_J}, 1")
    a("s_mul_i32 s28, s28, 160")
    a("s_add_u32 s32, s32, s28")
    for k in range(5):
        a(f"buffer_load_dwordx2 {vr('v', 100 + 2 * k, 2)}, v2, {S(16)}, s32 offen offset:{32 * k}")
    a("s_lshl_b32 s33, s34, 2")
    a("s_add_u32 s33, s33, s35")
    a(f"s_mul_i32 s34, s33, {16 * 10240}")
    a(f"s_mul_i32 s28, {S_W}, 2560")
    a("s_add_u32 s34, s34, s28")
    a(f"s_add_u32 s34, s34, {WS_EX}")
    a(f"s_mul_i32 s28, {S_J}, 10240")
    a("s_add_u32 s35, s34, s28")
    a(f"s_mul_i32 s28, {S_J}, 40960")
    a("s_add_u32 s34, s34, s28")
    a(f"s_add_u32 s33, s33, {C_EX}")
    sig_off(a, "s36", "s33")
    a("s_lshl_b32 s33, s33, 7")
    for j in range(4):
        if j < 3:
            a(f"s_cmp_lg_u32 {S_J}, {j}")
            a(f"s_cbranch_scc1 L_ex{j + 1}")
        for o in range(4):
            if o == j:
                continue
            d = 16 + o * 12
            for k in range(5):
                s = p4_acc(5 * (o >> 1) + k, o & 1)
                for e in range(2):
                    a(f"v_cvt_pk_bf16_f32 v{d + 2 * k + e}, v{s + 2 * e}, v{s + 2 * e + 1}")
            a(f"s_add_u32 s28, s35, {o * 40960}")
            a(f"buffer_store_dwordx4 {vr('v', d)}, v1, {S(SRD_WS)}, s28 offen sc1")
            a(f"buffer_store_dwordx4 {vr('v', d + 4)}, v1, {S(SRD_WS)}, s28 offen offset:1024 sc1")
            a(f"buffer_store_dwordx2 {vr('v', d + 8, 2)}, v3, {S(SRD_WS)}, s28 offen offset:2048 sc1")
        for k in range(5):
            s = p4_acc(5 * (j >> 1) + k, j & 1)
            for e in range(4):
                a(f"v_and_b32 v14, 0xffff0000, v{100 + 2 * k + (e >> 1)}" if e & 1 else
                  f"v_lshlrev_b32 v14, 16, v{100 + 2 * k + (e >> 1)}")
                a(f"v_add_f32 v{64 + 4 * k + e}, v{s + e}, v14")
        if j < 3:
            a("s_branch L_exs")
            a(f"L_ex{j + 1}:")
    a("L_exs:")
    a("s_waitcnt vmcnt(0)")
    a("s_barrier")
    a(sig_text("s36"))
    stamp(a, 18)
    a("s_mov_b32 s30, 40000")
    a("L_exp:")
    a(f"buffer_load_dword v11, off, {S(SRD_WS)}, s33 sc1")
    a("s_sub_u32 s30, s30, 1")
    a("v_cmp_gt_u32 vcc, 4, v11")
    a("s_cmp_eq_u32 s30, 0")
    a("s_cbranch_scc1 L_expx")
    a("s_cbranch_vccnz L_exp")
    a("L_expx:")
    stamp(a, 19)
    for n in range(3):
        a(f"s_add_u32 s28, {S_J}, {n + 1}")
        a("s_and_b32 s28, s28, 3")
        a("s_mul_i32 s28, s28, 10240")
        a("s_add_u32 s28, s28, s34")
        d = 16 + n * 12
        a(f"buffer_load_dwordx4 {vr('v', d)}, v1, {S(SRD_WS)}, s28 offen sc1")
        a(f"buffer_load_dwordx4 {vr('v', d + 4)}, v1, {S(SRD_WS)}, s28 offen offset:1024 sc1")
        a(f"buffer_load_dwordx2 {vr('v', d + 8, 2)}, v3, {S(SRD_WS)}, s28 offen offset:2048 sc1")
    for n in range(3):
        for k in range(10):
            a(f"v_lshlrev_b32 v14, 16, v{16 + n * 12 + k}")
            a(f"v_and_b32 v11, 0xffff0000, v{16 + n * 12 + k}")
            a(f"v_add_f32 v{64 + 2 * k}, v{64 + 2 * k}, v14")
            a(f"v_add_f32 v{65 + 2 * k}, v{65 + 2 * k}, v11")
    for k in range(5):
        for e in range(2):
            a(f"v_cvt_pk_bf16_f32 v{112 + 2 * k + e}, v{64 + k * 4 + 2 * e}, v{64 + k * 4 + 2 * e + 1}")
        a(f"buffer_store_dwordx2 {vr('v', 112 + 2 * k, 2)}, v2, {S(20)}, s32 offen offset:{32 * k}")


def build(path):
    a = Asm()
    entry(a)
    phase1_start(a)
    a(f"s_cmp_ge_u32 {S_W}, 2")
    a("s_cbranch_scc1 L_p1_vw")
    o = [phase1_iter(a, False, "k", False)]
    stamp(a, 5)
    o.append(phase1_iter(a, False, "k", True))
    a("s_branch L_p2")
    a("L_p1_vw:")
    o.append(phase1_iter(a, True, "v", False))
    stamp(a, 5)
    o.append(phase1_iter(a, True, "v", True))
    print("p1 overflow", o, file=sys.stderr)
    a("L_p2:")
    stamp(a, 6)
    phase2(a)
    phase3(a)
    phase4(a)
    stamp_dump(a)
    a("s_endpgm")
    for b in SLOW:
        a.ins += b.ins
    a("L_end:")
    a("s_endpgm")
    insert_waits(a)
    k = check_hazards(a, fix=True)
    check_scc(a)
    print("instructions", len(a.ins), "hazard pads", k, file=sys.stderr)
    head = open("cdna_kernels/" + NAME + ".s.ref").read().split("; @launch")[0]
    txt = head + "; @launch grid=(256,1,1) block=(256,1,1) lds=163840\n"
    txt += '.amdgcn_target "amdgcn-amd-amdhsa--gfx950"\n.text\n' + a.text() + f"""
.section .rodata,"a"
.p2align 6
.amdhsa_kernel {KN}
  .amdhsa_next_free_vgpr 512
  .amdhsa_next_free_sgpr 102
  .amdhsa_accum_offset 256
  .amdhsa_group_segment_fixed_size 0
  .amdhsa_kernarg_size 96
  .amdhsa_user_sgpr_count 2
  .amdhsa_user_sgpr_kernarg_segment_ptr 1
  .amdhsa_system_sgpr_workgroup_id_x 1
.end_amdhsa_kernel
"""
    open(path, "w").write(txt)


if __name__ == "__main__":
    OPT.update({k: int(v) for k, v in (kv.split("=") for kv in sys.argv[2:])})
    DIAG = bool(OPT.get("diag", 0))
    build(sys.argv[1])
```

```python
import sys
from asmlib import *

NAME = "parallel_sum__compressed_kv_cla__dense_activation_silu__prompt"
KN = NAME + "_kernel"

WS_CNT = 0
WS_XN = 0x10000
WS_KV = 0x400000
WS_A = 0x2400000
WS_EX = 0x3C00000
WS_DIAG = 0xF000000
WS_SIZE = 0x10000000
A_RB = 184 * 1024
C_KV, C_H, C_CTX, C_EX = 0, 32, 64, 96
OOB = 0x20000000

MF = "v_mfma_f32_16x16x32_bf16"
S_WG, S_W, S_H, S_I, S_J, S_HL = "s2", "s3", "s4", "s5", "s6", "s7"
SRD_WS = 8
PTR = 64
OPT = {}
DIAG = False
SLOW = []


def NTT():
    return " nt" if OPT.get("ntt", 0) else ""


def NTD():
    return " nt" if OPT.get("ntd", 0) else ""


def NT1():
    return " nt" if OPT.get("nt1", 0) else ""


def S(n):
    return f"s[{n}:{n + 3}]"


def vr(kind, n, w=4):
    return f"{kind}[{n}:{n + w - 1}]"


def srd(a, n, ptr, nbytes, add=None):
    if add is None:
        a(f"s_mov_b32 s{n}, s{PTR + 2 * ptr}")
        a(f"s_and_b32 s{n + 1}, s{PTR + 2 * ptr + 1}, 0xffff")
    else:
        a(f"s_add_u32 s{n}, s{PTR + 2 * ptr}, {add}")
        a(f"s_addc_u32 s{n + 1}, s{PTR + 2 * ptr + 1}, 0")
        a(f"s_and_b32 s{n + 1}, s{n + 1}, 0xffff")
    a(f"s_mov_b32 s{n + 2}, {nbytes}")
    a(f"s_mov_b32 s{n + 3}, 0x20000")


def stamp(a, k):
    if not DIAG:
        return
    a("s_memrealtime s[98:99]\ns_memtime s[100:101]\ns_waitcnt lgkmcnt(0)")
    a(f"v_writelane_b32 v15, s98, {k}\nv_writelane_b32 v15, s100, {32 + k}")


def sstamp(st, k, g, what):
    if DIAG and OPT.get("diag2") == what:
        st.put(f"v_writelane_b32 v15, s100, {32 + k}", g, g,
               pre=f"s_memrealtime s[98:99]\ns_memtime s[100:101]\ns_waitcnt lgkmcnt(0)\nv_writelane_b32 v15, s98, {k}")


def stamp_dump(a):
    if not DIAG:
        return
    a("s_waitcnt vmcnt(0)")
    stamp(a, 31)
    a(f"s_lshl_b32 s98, {S_WG}, 2\ns_add_u32 s98, s98, {S_W}\ns_lshl_b32 s98, s98, 8")
    a(f"s_add_u32 s98, s98, {WS_DIAG}")
    a("v_lshrrev_b32 v14, 2, v1")
    a(f"buffer_store_dword v15, v14, {S(SRD_WS)}, s98 offen")


def rowblocks(a, dst, mul, add):
    for q in range(4):
        a(f"s_sub_u32 s28, 15, {S_I}" if q < 2 else f"s_mov_b32 s28, {S_I}")
        a("s_lshl_b32 s28, s28, 3")
        if q & 1:
            a("s_add_u32 s28, s28, 7")
            a(f"s_sub_u32 s28, s28, {S_W}")
        else:
            a(f"s_add_u32 s28, s28, {S_W}")
        a(f"s_mul_i32 s28, s28, {mul}")
        a(f"s_add_u32 s{dst + q}, s28, {add}")


def poll_text(load, reg, want, tag):
    b = Asm()
    b(f"L_sl_{tag}:")
    b("s_mov_b32 s30, 40000")
    b(f"L_sl_{tag}_l:")
    b("s_sleep 2")
    b(load)
    b("s_sub_u32 s30, s30, 1")
    b(f"v_cmp_gt_u32 vcc, {want}, {reg}")
    b("s_cmp_eq_u32 s30, 0")
    b(f"s_cbranch_scc1 L_bk_{tag}")
    b(f"s_cbranch_vccnz L_sl_{tag}_l")
    b(f"s_branch L_bk_{tag}")
    SLOW.append(b)
    return f"v_cmp_gt_u32 vcc, {want}, {reg}", f"s_cbranch_vccnz L_sl_{tag}", f"L_bk_{tag}:"


def sig_off(a, dst, line):
    a(f"s_lshl_b32 {dst}, {line}, 7")
    a(f"s_cmp_eq_u32 {S_W}, 0")
    a(f"s_cselect_b32 {dst}, {dst}, {OOB}")


def sig_text(soff, srdn=SRD_WS):
    return f"buffer_atomic_add v13, v12, {S(srdn)}, {soff} offen sc1"


P1_W0 = 65536
P1_WM = 16896
P1_WS = 2 * P1_WM
P1_X = 133120
SRD_C, SRD_WK, SRD_WV, SRD_DBG = 12, 16, 20, 24
SRD_WQ, SRD_W1, SRD_XN = 52, 56, 60
P2_SLOT = [133120, 73984, 0, 25344, 105728]
P2_REG = ["v11", "v3", "v2", "v2", "v3"]
P2_OFF = [0, 0, 0, 25344, 31744]


def pair_base(m):
    return ("a", 80 + 8 * m) if m < 2 else ("v", 16 + 8 * (m - 2))


def p1_acc(vwave, j, i):
    m, half = (8 * (i >> 1) + j, i & 1) if vwave else (4 * i + (j >> 1), j & 1)
    k, b = pair_base(m)
    return k, b + 4 * half


def entry(a):
    a(f".globl {KN}\n.p2align 8\n.type {KN},@function\n{KN}:")
    a("s_cmp_ge_u32 s2, 256")
    a("s_cbranch_scc1 L_end")
    a(f"s_load_dwordx16 s[{PTR}:{PTR + 15}], s[0:1], 0")
    a(f"s_load_dwordx8 s[{PTR + 16}:{PTR + 23}], s[0:1], 64")
    a("s_getpc_b64 s[96:97]")
    a("L_pc:")
    a("v_lshrrev_b32 v1, 6, v0")
    a("s_and_b32 s28, s2, 7")
    a(f"s_lshr_b32 {S_J}, s28, 1")
    a("v_readfirstlane_b32 s3, v1")
    a("s_and_b32 s28, s28, 1")
    a("s_lshr_b32 s29, s2, 3")
    a(f"s_and_b32 {S_HL}, s29, 7")
    a("s_lshr_b32 s29, s29, 3")
    a(f"s_lshl_b32 {S_H}, {S_J}, 3")
    a(f"s_add_u32 {S_H}, {S_H}, {S_HL}")
    a("s_and_b32 s30, s29, 1")
    a("s_xor_b32 s30, s30, s28")
    a(f"s_lshl_b32 {S_I}, s29, 1")
    a(f"s_add_u32 {S_I}, {S_I}, s30")
    a("v_and_b32 v1, 63, v0")
    a("v_cmp_eq_u32 vcc, 0, v1")
    a("v_mov_b32 v13, 2.0")
    a("v_lshlrev_b32 v1, 4, v1")
    a("v_cndmask_b32 v12, v13, 0, vcc")
    a("v_mov_b32 v13, 1")
    if DIAG:
        a("v_mov_b32 v15, 0")
    stamp(a, 0)
    if OPT.get("codepf", 1):
        a("s_lshr_b32 s28, s2, 3")
        a("s_lshl_b32 s28, s28, 2")
        a(f"s_add_u32 s28, s28, {S_W}")
        a("s_mul_i32 s28, s28, 640")
        a("v_and_b32 v7, 7, v0")
        a("v_lshlrev_b32 v7, 7, v7")
        a("v_add_u32 v7, s28, v7")
        a("v_min_u32 v7, L_end-L_pc, v7")
        a("global_load_dword v10, v7, s[96:97]" + NTT())


def phase1_start(a):
    a("v_bfe_u32 v7, v0, 3, 3")
    a("v_and_b32 v8, 6, v7")
    a("v_and_b32 v11, 7, v0")
    a("v_xor_b32 v8, v8, v11")
    a("v_lshlrev_b32 v8, 4, v8")
    a("v_lshl_add_u32 v5, v7, 10, v8")
    a("v_mul_u32_u24 v9, 0x500, v11")
    a("v_lshl_add_u32 v9, v7, 4, v9")
    a("v_lshlrev_b32 v14, 4, v11")
    a("v_lshl_add_u32 v14, v7, 8, v14")
    a("v_bfe_u32 v7, v0, 4, 2")
    a("v_and_b32 v8, 15, v0")
    a("v_lshlrev_b32 v11, 4, v8")
    a("v_lshl_add_u32 v6, v7, 17, v11")
    a("v_and_b32 v11, 6, v8")
    a("v_xor_b32 v11, v11, v7")
    a("v_lshlrev_b32 v11, 4, v11")
    a("v_lshl_add_u32 v2, v8, 7, v11")
    a(f"s_and_b32 s28, {S_W}, 1")
    a("s_lshl_b32 s28, s28, 14")
    a("v_add_u32 v2, s28, v2")
    a("v_xor_b32 v3, 64, v2")
    a("v_bfe_u32 v8, v0, 2, 2")
    a("v_and_b32 v11, 1, v7")
    a("v_lshl_add_u32 v8, v11, 2, v8")
    a("v_mul_u32_u24 v8, 0x420, v8")
    a("v_lshrrev_b32 v11, 1, v7")
    a("v_lshl_add_u32 v8, v11, 8, v8")
    a("v_and_b32 v11, 3, v0")
    a("v_lshl_add_u32 v8, v11, 3, v8")
    a(f"s_lshr_b32 s28, {S_W}, 1")
    a(f"s_mul_i32 s28, s28, {P1_WM}")
    a(f"s_add_u32 s31, s28, {P1_W0}")
    a("v_add_u32 v4, s31, v8")
    a(f"s_add_u32 s91, s31, {P1_WS}")
    a(f"s_lshl_b32 s32, {S_I}, 18")
    a(f"s_lshl_b32 s28, {S_W}, 16")
    a("s_add_u32 s32, s32, s28")
    a(f"s_and_b32 s28, {S_W}, 1")
    a("s_lshl_b32 s28, s28, 3")
    a(f"s_lshr_b32 s29, {S_W}, 1")
    a("s_lshl_b32 s29, s29, 2")
    a("s_add_u32 s28, s28, s29")
    a("s_lshl_b32 s33, s28, 13")
    a(f"s_lshl_b32 s28, {S_H}, 8")
    a("s_add_u32 s33, s33, s28")
    a("s_mov_b32 s40, s33")
    a(f"s_lshl_b32 s34, {S_W}, 13")
    a(f"s_mul_i32 s42, {S_W}, {4 * 1056}")
    a(f"s_add_u32 s35, s42, {P1_W0}")
    a(f"s_mov_b32 s36, {-P1_WS & 0xffffffff}")
    a(f"s_mov_b32 s37, {P1_WS}")
    a(f"s_cmp_eq_u32 {S_W}, 0")
    a("s_cselect_b32 s39, 0, -1")
    a(f"s_and_b32 s28, {S_W}, 1")
    a("s_lshl_b32 s28, s28, 1")
    a(f"s_lshr_b32 s29, {S_W}, 1")
    a("s_lshl_b32 s29, s29, 3")
    a("s_add_u32 s28, s28, s29")
    a("s_mul_i32 s41, s28, 3456")
    a(f"s_mul_i32 s28, {S_J}, 7")
    a(f"s_add_u32 s28, s28, {S_HL}")
    a("s_min_u32 s92, s28, 26")
    a("s_lshl_b32 s28, s92, 7")
    a("s_add_u32 s41, s41, s28")
    a(f"s_mul_i32 s43, {S_W}, {2 * 1056}")
    a("s_add_u32 s43, s43, 16896")
    rowblocks(a, 44, 20480, 0)
    a(f"s_mul_i32 s29, {S_J}, {46 * 1024}")
    a(f"s_add_u32 s29, s29, {WS_A}")
    rowblocks(a, 48, A_RB, "s29")
    a(f"s_lshl_b32 s28, {S_H}, 4")
    a(f"s_lshl_b32 s29, {S_I}, 1")
    a("s_add_u32 s28, s28, s29")
    a(f"s_and_b32 s29, {S_W}, 1")
    a("s_add_u32 s28, s28, s29")
    a("s_lshl_b32 s28, s28, 1")
    a(f"s_lshr_b32 s29, {S_W}, 1")
    a("s_add_u32 s28, s28, s29")
    a("s_lshl_b32 s28, s28, 15")
    a(f"s_add_u32 s93, s28, {WS_KV}")
    for r in range(80, 256):
        a(f"v_mov_b32 v{r}, 0")
    for r in range(80, 96):
        a(f"v_accvgpr_write_b32 a{r}, 0")
    a("s_waitcnt lgkmcnt(0)")
    stamp(a, 1)
    srd(a, SRD_DBG, 0, 2621440)
    a(f"s_mul_i32 s29, {S_WG}, 10240")
    a(f"s_lshl_b32 s28, {S_W}, 7")
    a("s_add_u32 s29, s29, s28")
    a(f"s_lshl_b32 s28, {S_W}, 10")
    a(f"s_add_u32 s30, s28, {P1_X}")
    for k in range(3):
        if k == 2:
            a(f"s_cmp_ge_u32 {S_W}, 2")
            a("s_cbranch_scc1 L_x2")
        a(f"s_add_u32 m0, s30, {k * 4096}")
        a(f"s_add_u32 s28, s29, {k * 512}")
        a(f"buffer_load_dwordx4 v9, {S(SRD_DBG)}, s28 offen{NT1()} lds", tok_w=["X"])
    a("L_x2:")
    srd(a, SRD_C, 1, 2097152)

    def cdma(slot, t):
        for pp in range(8):
            a(f"s_add_u32 m0, s34, {slot * 32768 + pp * 1024}")
            a(f"s_add_u32 s28, s32, {pp * 8192 + t * 128}")
            a(f"buffer_load_dwordx4 v5, {S(SRD_C)}, s28 offen{NT1()} lds", tok_w=["C%d" % t])

    cdma(0, 0)
    srd(a, SRD_WS, 11, WS_SIZE)
    srd(a, SRD_WK, 3, 4194304)
    srd(a, SRD_WV, 4, 4194304)
    srd(a, SRD_DBG, 10, 256)
    srd(a, SRD_WQ, 2, 5242880)
    srd(a, SRD_W1, 7, 2211840)
    srd(a, SRD_XN, 11, 2621440, add=WS_XN)
    a(f"s_cmp_eq_u32 {S_J}, 3")
    a("s_cselect_b32 s29, 6, 7")
    a(f"s_cmp_lt_u32 {S_HL}, s29")
    a(f"s_cselect_b32 s{SRD_W1 + 2}, 2211840, 0")
    a("v_and_b32 v16, 63, v0")
    a(f"s_lshl_b32 s94, {S_WG}, 2")
    a(f"s_add_u32 s94, s94, {S_W}")
    a("s_lshl_b32 s28, s94, 11")
    a("s_add_u32 s28, s28, 256")
    a("v_lshlrev_b32 v17, 10, v16")
    a("v_add_u32 v17, s28, v17")
    a(f"v_mov_b32 v8, s{PTR + 2}\nv_mov_b32 v9, s{PTR + 3}\nv_mov_b32 v7, 0x80")
    for lo, ptr, per, first, step in ((2, 3, 512, 64 * 8192, 64 * 8192), (6, 4, 512, 64 * 8192, 64 * 8192),
                                      (10, 2, 1024, 0, 128 * 8192), (18, 7, 432, 0, 128 * 3456)):
        a(f"s_mul_i32 s28, s94, {per}")
        if lo == 18:
            a("s_and_b32 s28, s28, 0xffffff80")
            a(f"s_min_u32 s28, s28, {128 * 3456 - 512}")
        a(f"s_add_u32 s28, s28, {(first - lo * 128) & 0xffffffff}")
        a("v_min_u32 v18, 21, v16")
        a("v_lshlrev_b32 v18, 7, v18")
        a("v_add_u32 v18, s28, v18")
        a(f"v_cmp_le_u32 vcc, {lo}, v16")
        a(f"v_mov_b32 v22, s{PTR + 2 * ptr}\nv_mov_b32 v23, s{PTR + 2 * ptr + 1}\nv_mov_b32 v24, {step}")
        a("v_cndmask_b32 v17, v17, v18, vcc")
        a("v_cndmask_b32 v8, v8, v22, vcc\nv_cndmask_b32 v9, v9, v23, vcc\nv_cndmask_b32 v7, v7, v24, vcc")
    a("v_add_co_u32 v8, vcc, v8, v17")
    a("v_addc_co_u32 v9, vcc, 0, v9, vcc")
    a.need("X")
    a("s_barrier")
    stamp(a, 2)
    a(f"s_mul_i32 s28, {S_W}, 3")
    for s in range(10):
        a(f"s_add_u32 s30, s28, {s}")
        a("s_cmp_ge_u32 s30, 10")
        a("s_cselect_b32 s31, 10, 0")
        a("s_sub_u32 s30, s30, s31")
        if s < 3:
            a(f"s_lshl_b32 s{88 + s}, s30, 11")
        a("s_lshl_b32 s30, s30, 10")
        a(f"s_add_u32 s30, s30, {P1_X}")
        a("v_add_u32 v11, s30, v1")
        a(f"ds_read_b128 {vr('v', 16 + 4 * s)}, v11")
    a("s_mov_b32 s28, 0x3f803f80")
    a("v_mov_b32 v60, 0\nv_mov_b32 v61, 0\nv_mov_b32 v62, 0\nv_mov_b32 v63, 0")
    wd = [(mat, e) for mat in range(2) for e in range(4)]
    for k in range(40):
        a(f"v_dot2_f32_bf16 v{60 + (k & 1)}, v{16 + k}, s28, v{60 + (k & 1)}")
        a(f"v_dot2_f32_bf16 v{62 + (k & 1)}, v{16 + k}, v{16 + k}, v{62 + (k & 1)}")
        if k % 5 == 4:
            mat, e = wd.pop(0)
            a(f"s_add_u32 m0, s35, {mat * P1_WM + e * 1056}")
            a(f"s_add_u32 s29, s33, {e * 8192}")
            a(f"buffer_load_dwordx4 v6, {S(SRD_WK + 4 * mat)}, s29 offen{NT1()} lds", tok_w=["W0"])
    a("v_add_f32 v60, v60, v61")
    a("v_add_f32 v62, v62, v63")
    a("v_add_f32_dpp v60, v60, v60 row_ror:8 row_mask:0xf bank_mask:0xf")
    a("v_add_f32_dpp v62, v62, v62 row_ror:8 row_mask:0xf bank_mask:0xf")
    for sw in ("v_permlane16_swap_b32", "v_permlane32_swap_b32"):
        a("v_mov_b32 v61, v60\nv_mov_b32 v63, v62")
        a(f"{sw} v60, v61\n{sw} v62, v63")
        a("v_add_f32 v60, v60, v61\nv_add_f32 v62, v62, v63")
    a("s_mov_b32 s28, 0x3acccccd")
    a("v_mul_f32 v60, s28, v60")
    a("v_mul_f32 v62, s28, v62")
    a("v_fma_f32 v62, -v60, v60, v62")
    a("v_max_f32 v62, 0, v62")
    a("v_cvt_pk_bf16_f32 v61, v60, v62")
    a("v_lshlrev_b32 v60, 16, v61")
    a("v_and_b32 v62, 0xffff0000, v61")
    a("v_add_f32 v62, 0x3727c5ac, v62")
    a("v_cvt_pk_bf16_f32 v62, v62, v62")
    a("v_and_b32 v62, 0xffff0000, v62")
    a("v_sqrt_f32 v62, v62")
    a("v_cvt_pk_bf16_f32 v62, v62, v62")
    a("v_and_b32 v62, 0xffff0000, v62")
    a("v_rcp_f32 v62, v62")
    a(f"s_lshr_b32 s28, {S_WG}, 1")
    a("s_mul_i32 s28, s28, 20480")
    a(f"s_and_b32 s29, {S_WG}, 1")
    a("s_lshl_b32 s29, s29, 7")
    a("s_add_u32 s28, s28, s29")
    for s in range(3):
        for k in range(4):
            r = 16 + 4 * s + k
            a(f"v_lshlrev_b32 v64, 16, v{r}")
            a(f"v_and_b32 v65, 0xffff0000, v{r}")
            a("v_sub_f32 v64, v64, v60")
            a("v_sub_f32 v65, v65, v60")
            a("v_cvt_pk_bf16_f32 v64, v64, v65")
            a("v_and_b32 v65, 0xffff0000, v64")
            a("v_lshlrev_b32 v64, 16, v64")
            a("v_mul_f32 v64, v64, v62")
            a("v_mul_f32 v65, v65, v62")
            a(f"v_cvt_pk_bf16_f32 v{68 + 4 * s + k}, v64, v65")
    for r in range(16, 68):
        a(f"v_mov_b32 v{r}, 0")
    for s in range(3):
        a(f"s_add_u32 s29, s28, s{88 + s}")
        a(f"buffer_store_dwordx4 {vr('v', 68 + 4 * s)}, v14, {S(SRD_XN)}, s29 offen sc1")
    sig_off(a, "s29", S_WG)
    a(f"buffer_store_dword v16, v12, {S(SRD_WS)}, s29 offen sc1")
    cdma(1, 1)
    if OPT.get("touch", 1):
        a("s_mov_b64 exec, 0x3ff")
        for k in range(2):
            a("global_load_dword v10, v[8:9], off")
            a("v_add_co_u32 v8, vcc, v8, v7")
            a("v_addc_co_u32 v9, vcc, 0, v9, vcc")
        a("s_mov_b64 exec, -1")
    for r in range(68, 80):
        a(f"v_mov_b32 v{r}, 0")
    a(f"s_add_u32 s33, s33, {64 * 8192}")
    a(f"s_add_u32 s35, s35, {P1_WS}")
    a("s_add_u32 s32, s32, 256")
    a(f"s_and_b32 s95, {S_WG}, 63")
    a("s_lshl_b32 s95, s95, 2")
    a("s_mov_b32 s38, 0")
    stamp(a, 3)
    a.need("C0", "W0")
    a("s_barrier")
    stamp(a, 4)
    for ks in range(2):
        for hf in range(2):
            a(f"ds_read_b64_tr_b16 {vr('a', 64 + ks * 4 + hf * 2, 2)}, v4 offset:{hf * 8448 + ks * 512}")
    for i in range(6):
        for ks in range(2):
            a(f"ds_read_b128 {vr('a', i * 8 + ks * 4)}, v{2 + ks} offset:{i * 2048}")


def p2_wread(R, seq):
    t, jb = seq[R]
    sl = t % 5
    out = []
    for ks in range(2):
        for hf in range(2):
            off = (16896 + jb * 32 + hf * 128 + ks * 512) if jb < 4 else ((jb - 4) * 32 + hf * 8448 + ks * 512)
            out.append(f"ds_read_b64_tr_b16 {vr('a', (R % 3) * 8 + ks * 4 + hf * 2, 2)}, {P2_REG[sl]} offset:{P2_OFF[sl] + off}")
    return out


def p2_dma(st, t, lo, hi, prev):
    slot = P2_SLOT[t % 5]
    for k, (mat, e) in enumerate([(0, 0), (0, 1), (0, 2), (0, 3), (1, 0), (1, 1)]):
        g = lo + 2 + (k * (hi - lo - 2)) // 6
        m0 = st.put(f"s_add_u32 m0, s{42 + mat}, {slot + e * 1056}", g - 2, g - 1, after=prev)
        so = st.put(f"s_add_u32 s28, s{40 + mat}, {(64 * t + e) * (3456 if mat else 8192)}", g - 2, g - 1, after=prev)
        prev = st.put(f"buffer_load_dwordx4 v{6 - mat}, {S(SRD_WQ + 4 * mat)}, s28 offen{NTD()} lds", g, g + 3,
                      after=[m0, so], dist=1, tok_w=["QW%d" % t])
    return prev


def p2_xload(t, q, ks):
    return (f"buffer_load_dwordx4 {vr('a', 96 + (t & 3) * 32 + q * 8 + ks * 4)}, v1, {S(SRD_XN)}, s{44 + q} offen "
            f"offset:{(t & 1) * 2048 + ks * 1024} sc1")


P2_SEQ = [(t, jb) for t in range(7) for jb in range(12)] + [(t, jb) for t in (7, 8, 9) for jb in range(4)] + \
         [(t, jb) for t in (7, 8, 9) for jb in range(4, 12)]


def phase1_iter(a, vwave, tag, mode):
    st = Stream()
    done = {}
    for j in range(8):
        for i in range(8):
            k, r = p1_acc(vwave, j, i)
            for ks in range(2):
                w = vr("a", 64 + (j & 1) * 8 + ks * 4)
                c = vr("a", i * 8 + ks * 4)
                x, y = (c, w) if vwave else (w, c)
                n = st.mfma(f"{MF} {vr(k, r)}, {x}, {y}, {vr(k, r)}")
            done[(8 * (i >> 1) + j) if vwave else (4 * i + (j >> 1))] = n
    top = [st.put(f"ds_read_b128 {vr('a', i * 8 + ks * 4)}, v{2 + ks} offset:{i * 2048}", 0, 3)
           for i in (6, 7) for ks in range(2)]
    lastw = None
    for j in range(1, 8):
        for ks in range(2):
            for hf in range(2):
                lastw = st.put(f"ds_read_b64_tr_b16 {vr('a', 64 + (j & 1) * 8 + ks * 4 + hf * 2, 2)}, v4 "
                               f"offset:{j * 32 + hf * 8448 + ks * 512}", 16 * (j - 1) + (4 if j == 1 else 1), 16 * (j - 1) + 8)
    if mode != 7:
        if mode == 0:
            barA = st.put("s_waitcnt lgkmcnt(0)", 12, 12)
            barA = st.put("s_barrier", 13, 13, after=barA)
        tog = [st.put(f"v_xor_b32 v{2 + ks}, 0x8000, v{2 + ks}", 20, 100, after=top) for ks in range(2)]
        wt = st.put("v_add_u32 v4, s37, v4", 106, 109, after=lastw)
        st.put("s_sub_u32 s37, 0, s37", 110, 120, after=wt)
        prev, g = None, 3
        for mat in range(2):
            for e in range(4):
                m0 = st.put(f"s_add_u32 m0, s35, {mat * P1_WM + e * 1056}", g - 1, g - 1, after=prev)
                so = st.put(f"s_add_u32 s28, s33, {e * 8192}", g, g, after=prev)
                prev = st.put(f"buffer_load_dwordx4 v6, {S(SRD_WK + 4 * mat)}, s28 offen{NT1()} lds", g + 1, g + 2,
                              after=[m0, so], dist=1, tok_w=["W"])
                g += 5
        st.put(f"s_add_u32 s33, s33, {64 * 8192}", g, g + 4, after=prev)
        u = st.put("s_add_u32 s35, s35, s36", g, g + 4, after=prev)
        st.put("s_sub_u32 s36, 0, s36", g + 1, g + 6, after=u)
        if mode == 0:
            if OPT.get("touch", 1):
                gt = 76 if vwave else 45
                tl = st.put("global_load_dword v10, v[8:9], off", gt, gt, after=prev,
                            pre=f"s_cmp_eq_u32 s38, 5\ns_cbranch_scc1 L_nt_{tag}", post=f"L_nt_{tag}:")
                p = st.put("s_cselect_b64 s[88:89], 3, 0", gt + 1, gt + 3, pre="s_cmp_ge_u32 s38, 3")
                p = st.put("v_cndmask_b32 v7, v7, 0, s[88:89]", gt + 2, gt + 5, after=[p, tl], dist=1)
                p = st.put("v_add_co_u32 v8, vcc, v8, v7", gt + 3, gt + 8, after=p, dist=1)
                st.put("v_addc_co_u32 v9, vcc, 0, v9, vcc", gt + 5, gt + 11, after=p, dist=2)
            g = 52
            for pp in range(8):
                m0 = st.put(f"s_add_u32 m0, s34, {pp * 1024}", g - 1, g - 1, after=[prev, barA])
                so = st.put(f"s_add_u32 s28, s32, {pp * 8192}", g, g, after=prev)
                prev = st.put(f"buffer_load_dwordx4 v5, {S(SRD_C)}, s28 offen{NT1()} lds", g + 1, g + 2, after=[m0, so], dist=1)
                g += 7
            st.put("s_add_u32 s32, s32, 128", g, g + 3, after=prev)
            st.put("s_xor_b32 s34, s34, 0x8000", g, g + 3, after=prev)
        else:
            pl = f"buffer_load_dword v11, v14, {S(SRD_DBG)}, 0 offen sc1"
            p = st.put("v_lshrrev_b32 v14, 2, v1", -1)
            pld = st.put(pl, 0, 1, after=p)
            p = st.put("v_bfe_u32 v7, v0, 3, 1", 4, 16)
            p = st.put("v_bfe_u32 v8, v0, 4, 2", 4, 17, after=p)
            p = st.put("v_lshlrev_b32 v8, 2, v8", 4, 18, after=p)
            p = st.put("v_add_lshl_u32 v7, v7, v8, 2", 4, 19, after=p)
            p = st.put("v_mul_u32_u24 v7, 0xd80, v7", 4, 20, after=p)
            p = st.put("v_and_b32 v8, 7, v0", 4, 21, after=p)
            pat = st.put("v_lshl_add_u32 v5, v8, 4, v7", 4, 22, after=p)
            cmp_, br, lab = poll_text(pl, "v11", 4, "s1" + tag)
            p = st.put(cmp_, 38, 38, after=pld)
            xl = st.put(lab, 42, 42, after=p, pre=br)
            prev = p2_dma(st, 0, 44, 74, [prev, pat])
            g = 76
            for q in range(4):
                for ks in range(2):
                    xl = st.put(p2_xload(0, q, ks), g, g + 3, after=[xl, prev])
                    g += 4
        nb = st.put("", 110, 110, tok_r=["W"])
        nb = st.put("s_waitcnt lgkmcnt(0)", 110, 110, after=nb)
        barB = st.put("s_barrier", 111, 111, after=nb)
        if mode == 0:
            st.put(f"L_s1b_{tag}:", 112, 112, after=barB, pre=f"s_cmp_eq_u32 s38, s39\ns_cbranch_scc1 L_s1_{tag}")
            b = Asm()
            b(f"L_s1_{tag}:")
            b(sig_text("s95", SRD_DBG))
            b(f"s_branch L_s1b_{tag}")
            SLOW.append(b)
        for ks in range(2):
            for hf in range(2):
                st.put(f"ds_read_b64_tr_b16 {vr('a', 64 + ks * 4 + hf * 2, 2)}, v4 offset:{hf * 8448 + ks * 512}",
                       113, 120, after=[barB, wt])
        for i in range(6):
            for ks in range(2):
                st.put(f"ds_read_b128 {vr('a', i * 8 + ks * 4)}, v{2 + ks} offset:{i * 2048}", 113 + 2 * i,
                       min(127, 120 + 2 * i), after=[barB] + tog)
        if mode == 6:
            return st.emit(a)
        st.put("s_add_u32 s38, s38, 1", 122, 124)
        st.put("s_cmp_lt_u32 s38, 6", 126, 126)
        a(".p2align 3")
        a(f"L_p1_{tag}:")
        over = st.emit(a)
        a(f"s_cbranch_scc1 L_p1_{tag}")
        return over
    ra = st.put("v_subrev_u32 v2, s91, v4", 8, 30, after=top)
    rb = st.put(f"v_add_u32 v3, {P2_SLOT[1]}, v2", 8, 32, after=ra)
    prev = p2_dma(st, 1, 4, 50, None)
    g = 52
    xl = prev
    for q in range(4):
        for ks in range(2):
            xl = st.put(p2_xload(1, q, ks), g, g + 4, after=xl)
            g += 7
        st.put(f"s_add_u32 s{44 + q}, s{44 + q}, 4096", g - 5, 126, after=xl)
    chk = None
    p = chk
    for m in range(2):
        for k in range(4):
            p = st.put(f"v_accvgpr_read_b32 v7, a{80 + 8 * m + 2 * k}", done[m] + 5, 60 + 24 * m + 4 * k, after=p)
            p = st.put(f"v_accvgpr_read_b32 v14, a{81 + 8 * m + 2 * k}", done[m] + 5, 61 + 24 * m + 4 * k, after=p)
            p = st.put(f"v_cvt_pk_bf16_f32 v{8 + k}, v7, v14", done[m] + 5, 62 + 24 * m + 4 * k, after=p)
        p = st.put(f"buffer_store_dwordx4 v[8:11], v1, {S(SRD_WS)}, s93 offen offset:{m * 1024} sc1", 0, 80 + 24 * m,
                   after=p, dist=1, tok_w=["KVS"])
        p = st.put("s_nop 0", 0, 81 + 24 * m, after=p, dist=1)
    rb = st.put(f"v_add_u32 v11, {P2_SLOT[0]}, v2", 0, 110, after=[p, ra])
    for m in range(2, 32):
        b = pair_base(m)[1]
        p = None
        for k in range(4):
            p = st.put(f"v_cvt_pk_bf16_f32 v{b + k}, v{b + 2 * k}, v{b + 2 * k + 1}", min(done[m] + 5, 127),
                       min(done[m] + 24, 127), after=p)
    nb = st.put("", 108, 108, tok_r=["QW0"])
    bar = st.put("s_barrier", 109, 109, after=nb)
    for R in range(2):
        for k, t in enumerate(p2_wread(R, P2_SEQ)):
            st.put(t, 114 + 2 * R, 122 + 2 * R, after=[bar, rb])
    return st.emit(a, search=True)


Q_SCALE = 0x3e0293ee
V_S, V_P, V_NM, V_L, V_Q, V_ND, V_ONE, V_T = 16, 80, 112, 128, 144, 208, 216, 220
SRD_KV = 12


def a_o(n):
    return 96 + 4 * n if n < 8 else 160 + 4 * (n - 8)


def a_x(f):
    return 4 * f if f < 8 else 128 + 4 * (f - 8)


def a_y(f):
    return 32 + 4 * f


def _qmap():
    free = [("v", 20 + 8 * k) for k in range(30) if not 144 <= 20 + 8 * k < 208] + [("a", 24), ("a", 28)]
    m = {}
    for q in range(4):
        for jb in range(8):
            if jb in (2, 6):
                m[(jb, q)] = ("v", V_Q + (q * 4 + (jb >> 1)) * 4)
    for jb in range(8):
        for q in range(4):
            if (jb, q) not in m:
                m[(jb, q)] = free.pop(-1 if jb == 0 and q < 2 else 0)
    return m


QMAP = _qmap()
KV_FIRST = [(0, "K0"), (0x8000, "KV"), (0x4000, "KV"), (0xc000, "KV"), (0x10000, "KV"), (0x18000, "KV"), (0x14000, "KV")]


def kv_first(a, which):
    for rel, tok in which:
        a(f"s_add_u32 s28, s34, {rel}")
        a("s_and_b32 m0, s28, 0x1ffff")
        for k in range(4):
            a(f"buffer_load_dwordx4 v1, {S(SRD_KV)}, s28 offen offset:{k * 1024} sc1 lds", tok_w=[tok])


def phase2(a):
    st = Stream()
    seq = P2_SEQ
    first, lastrow, qdone = {}, {}, {}
    for R, (t, jb) in enumerate(seq):
        first.setdefault(t, R)
        lastrow[t] = R
        for q in range(4):
            k, r = ("a", 32 + (q * 2 + (jb >> 1)) * 8 + (jb & 1) * 4) if jb < 4 else QMAP[(jb - 4, q)]
            for ks in range(2):
                c = "0" if t == 0 and ks == 0 else vr(k, r)
                n = st.mfma(f"{MF} {vr(k, r)}, {vr('a', (R % 3) * 8 + ks * 4)}, {vr('a', 96 + (t & 3) * 32 + q * 8 + ks * 4)}, {c}")
            qdone[(jb, q)] = n
    nm = len(st.m)
    bars = {0: None}
    for t in range(1, 10):
        g = 8 * (first[t] - 2) - 1
        nb = st.put("", g - 1, g - 1, tok_r=["QW%d" % t])
        bars[t] = st.put("s_barrier", g, g, after=nb)
    for k in range(1, 10):
        sstamp(st, 20 + k, 96 * k + 4, 2)
    lastrd = {}
    for R in range(2, len(seq)):
        for k, t in enumerate(p2_wread(R, seq)):
            lastrd[seq[R][0]] = st.put(t, 8 * (R - 2) + (k >> 1), 8 * (R - 2) + 6, after=bars[seq[R][0]])
    prev = None
    adv = {}
    pace = OPT.get("pace", 82)
    for t in range(2, 10):
        g = pace * (t - 2) + 2
        prev = p2_dma(st, t, g, g + pace * 3 // 7, [prev, bars[t - 3] if t >= 5 else None])
        g += pace * 3 // 7 + 2
        assert t < 4 or g >= 8 * lastrow[t - 4] + 8, t
        for q in range(4):
            for ks in range(2):
                prev = st.put(p2_xload(t, q, ks), g, g + 4, after=[prev, adv.get(q)])
                g += pace // 14
            if t & 1 and t < 9:
                adv[q] = st.put(f"s_add_u32 s{44 + q}, s{44 + q}, 4096", g - 3, g + 10, after=prev)
    span = OPT.get("stspan", 700)
    p = None
    for m in range(2, 32):
        g = 6 + ((m - 2) * span) // 30
        if (m & 3) == 0:
            p = st.put("s_add_u32 s93, s93, 4096", g - 4, g - 1, after=p)
        p = st.put(f"buffer_store_dwordx4 {vr('v', pair_base(m)[1])}, v1, {S(SRD_WS)}, s93 offen offset:{(m & 3) * 1024} sc1"
                   if not OPT.get("nost") else "s_nop 0", g, g + 6, after=p, tok_w=["KVS"])
    laststore = p
    sc = Asm()
    sc(f"s_lshl_b32 s28, {S_H}, 20")
    sc(f"s_add_u32 s28, s28, {WS_KV}")
    sc(f"s_add_u32 s{SRD_KV}, s{PTR + 22}, s28\ns_addc_u32 s{SRD_KV + 1}, s{PTR + 23}, 0")
    g0 = 26
    glue = "\n".join(i.text for i in sc.ins)
    p = st.put(f"s_and_b32 s{SRD_KV + 1}, s{SRD_KV + 1}, 0xffff", g0, g0, pre=glue.replace("s28", "s29"))
    for txt in (f"s_sub_u32 s{SRD_KV + 2}, 16, {S_I}", f"s_lshl_b32 s{SRD_KV + 2}, s{SRD_KV + 2}, 16",
                f"s_mov_b32 s{SRD_KV + 3}, 0x20000", f"s_lshl_b32 s34, {S_W}, 12", f"s_lshl_b32 s35, {S_H}, 7"):
        p = st.put(txt, g0 + 1, 90, after=p)
    p = st.put(f"s_cselect_b32 s36, s35, {OOB}", g0 + 2, 95, after=p, pre=f"s_cmp_eq_u32 {S_W}, 0")
    p = st.put(f"s_add_u32 s37, {S_HL}, 1", g0 + 2, 100, after=p)
    p = st.put("s_cselect_b32 s37, 0, s37", g0 + 2, 110, after=p, pre="s_cmp_eq_u32 s37, 7")
    p = st.put(f"s_cselect_b32 s37, s37, {S_HL}", g0 + 2, 120, after=p, pre=f"s_cmp_eq_u32 {S_J}, 3")
    p = st.put("s_lshl_b32 s37, s37, 11", g0 + 2, 130, after=p)
    p = st.put(f"s_cselect_b32 s37, {OOB}, s37", g0 + 2, 140, after=p, pre=f"s_cmp_eq_u32 {S_HL}, 7")
    gs = span + OPT.get("sigd", 80)
    nb = st.put("", gs, gs, after=laststore, tok_r=["KVS"])
    bs = st.put("s_barrier", gs + 1, gs + 1, after=nb)
    sg = st.put(sig_text("s36"), gs + 2, gs + 4, after=bs)
    gp = OPT.get("pollg", 880)
    pl = f"buffer_load_dword v14, off, {S(SRD_WS)}, s35 sc1"
    pld = st.put(pl, gp, gp + 2, after=sg)
    cmp_, br, lab = poll_text(pl, "v14", 8, "s2")
    p = st.put(cmp_, gp + 40, gp + 40, after=pld)
    chk = st.put(lab, gp + 44, gp + 44, after=p, pre=br)
    rel8 = st.put("s_barrier", 8 * lastrow[8] + 11, 8 * lastrow[8] + 11)
    p = [chk, rel8]
    g = gp + 46
    for rel, tok in KV_FIRST[:5]:
        p = st.put(f"s_add_u32 s28, s34, {rel}", min(g - 1, nm - 1), min(g, nm - 1), after=p)
        p = st.put("s_and_b32 m0, s28, 0x1ffff", min(g - 1, nm - 1), min(g, nm - 1), after=p)
        for k in range(4):
            p = st.put(f"buffer_load_dwordx4 v1, {S(SRD_KV)}, s28 offen offset:{k * 1024} sc1 lds", min(g, nm - 1),
                       min(g + 2, nm - 1), after=p, dist=1, tok_w=[tok])
            g += 4
        if g > nm:
            break
    rest = KV_FIRST[KV_FIRST.index((rel, tok)) + 1:5]
    for n in range(32):
        r = a_o(n)
        dead = 8 * lastrow[{96: 8, 160: 6, 192: 7, 224: 0}[r & ~31]] + 8 if r < 224 else 100
        for k in range(4):
            st.put(f"v_accvgpr_write_b32 a{r + k}, 0", dead + 3, nm - 1 if r < 128 else min(nm - 1, dead + 200))
    tail = Asm()
    f0 = 8 * (first[7] + 12) + 5
    budget = [OPT.get("silu_in", 4)]
    p = laststore
    for q in range(4):
        for pr in range(2):
            n = q * 2 + pr
            base = 16 + (n & 1) * 40
            x = [base + 8 * (k >> 2) + (k & 3) for k in range(8)]
            t = [base + 16 + 8 * (k >> 2) + (k & 3) for k in range(8)]
            o = base + 32
            ops = [f"v_accvgpr_read_b32 v{x[k]}, a{32 + n * 8 + k}" for k in range(8)]
            ops += [f"v_mul_f32 v{t[k]}, 0xbfb8aa3b, v{x[k]}" for k in range(8)]
            ops += [f"v_exp_f32 v{t[k]}, v{t[k]}" for k in range(8)]
            ops += [f"v_add_f32 v{t[k]}, 1.0, v{t[k]}" for k in range(8)]
            ops += [f"v_rcp_f32 v{t[k]}, v{t[k]}" for k in range(8)]
            ops += [f"v_mul_f32 v{x[k]}, v{x[k]}, v{t[k]}" for k in range(8)]
            ops += [f"v_cvt_pk_bf16_f32 v{o + k}, v{x[2 * k]}, v{x[2 * k + 1]}" for k in range(4)]
            sto = f"buffer_store_dwordx4 {vr('v', o)}, v1, {S(SRD_WS)}, s30 offen offset:{pr * 1024} sc1"
            adr = f"s_add_u32 s30, s{48 + q}, s37"
            if n < budget[0]:
                for k, op in enumerate(ops):
                    p = st.put(op, f0, nm - 1, after=p)
                p = st.put(sto, f0, nm - 1, after=p, dist=1, pre=adr, tok_w=["H"])
            else:
                for op in ops:
                    tail(op)
                tail(adr)
                tail(sto, tok_w=["H"])
    over = st.emit(a)
    print("p2 overflow", over, "tail", st.tail, file=sys.stderr)
    stamp(a, 7)
    work = Asm()
    for ks in range(4):
        for q in range(4):
            src = []
            for h in range(2):
                k, r = QMAP[(2 * ks + h, q)]
                if k == "a":
                    for e in range(4):
                        work(f"v_accvgpr_read_b32 v{8 + e}, a{r + e}")
                    r = 8
                for e in (0, 2):
                    work(f"v_pk_mul_f32 v[{r + e}:{r + e + 1}], v[{r + e}:{r + e + 1}], s[0:1]")
                src += [r, r + 2]
            for e in range(4):
                work(f"v_cvt_pk_bf16_f32 v{V_Q + (q * 4 + ks) * 4 + e}, v{src[e]}, v{src[e] + 1}")
    a(f"s_mov_b32 s0, {hex(Q_SCALE)}\ns_mov_b32 s1, {hex(Q_SCALE)}")
    w = list(tail.ins) + list(work.ins)
    for rel, tok in rest:
        a(f"s_add_u32 s28, s34, {rel}")
        a("s_and_b32 m0, s28, 0x1ffff")
        for k in range(4):
            for _ in range(10):
                a.add(w.pop(0))
            a(f"buffer_load_dwordx4 v1, {S(SRD_KV)}, s28 offen offset:{k * 1024} sc1 lds", tok_w=[tok])
    for i in w:
        a.add(i)


LDS_FLAG = 163832
S_MASK = 88
SRD_W2, SRD_WO, SRD_CUR, SRD_AA = 16, 20, 24, 40
P4_ST = 20480
V4_RD, V4_DM = 244, 248
P4_A = [[64, 68, 72, 76], [120, 124, 136, 140], [16, 20, 24, 28], [32, 36, 40, 44]]
P4_ACC = 144


P4_SEL = [("s_cmp_lt_u32 s97, 7\n"
           f"s_cselect_b64 s[{SRD_CUR}:{SRD_CUR + 1}], s[{SRD_W2}:{SRD_W2 + 1}], s[{SRD_WO}:{SRD_WO + 1}]", None),
          (f"s_cmp_lt_u32 s97, 7\ns_cselect_b32 s{SRD_CUR + 2}, s{SRD_W2 + 2}, s{SRD_WO + 2}", None),
          ("s_cmp_lt_u32 s97, 7\ns_cselect_b32 s31, s44, s45", None),
          (f"s_cmp_lt_u32 s97, 23\ns_cselect_b32 s{SRD_CUR + 2}, s{SRD_CUR + 2}, 0", None)]


def p4_dma(tok, early=False):
    out = [("s_mov_b32 m0, s96", None)]
    for p in range(5):
        if p == 4:
            out.append(("s_add_u32 m0, s96, 4096", None))
        src = f"{S(SRD_W2)}, s44" if early else f"{S(SRD_CUR)}, s31"
        out.append((f"buffer_load_dwordx4 v{V4_DM + p}, {src} offen offset:{1024 * p if p < 4 else 0}{NTD()} lds", tok))
    out += [(f"s_add_u32 s96, s96, {P4_ST}", None), ("s_add_u32 s44, s44, 81920", None)]
    if early:
        return out
    out += [("s_cmp_ge_u32 s96, s1\ns_cselect_b32 s96, s0, s96", None),
            ("s_add_u32 s45, s45, 81920", None), ("s_add_u32 s97, s97, 1", None)]
    return out + P4_SEL


def p4_aload(t):
    out = []
    for r in range(2):
        for ks in range(2):
            out.append(f"buffer_load_dwordx4 {vr('v', P4_A[t & 3][r * 2 + ks])}, v1, {S(SRD_AA)}, s{46 + r} offen offset:{ks * 1024} sc1")
        out.append(f"s_add_u32 s{46 + r}, s{46 + r}, 2048")
    return out


def chain(st, items, lo, hi, after, tail=None):
    ismem = lambda t: t.startswith("buffer") or t.startswith("global")
    nv = sum(1 for t, _ in items if ismem(t))
    k, p, lastmem = 0, after, None
    for t, tok in items:
        g = lo + (k * (hi - lo)) // max(nv, 1)
        gp = lo + ((k - 1) * (hi - lo)) // max(nv, 1) + 1 if k else lo - 2
        ls = t.split("\n")
        if ismem(t):
            p = lastmem = st.put(t, g, g + 2, after=p, dist=1, tok_w=[tok] if tok else ())
            k += 1
        else:
            p = st.put(ls[-1], gp, tail if k == nv and tail else max(gp, g - 1), after=p, pre="\n".join(ls[:-1]) or None)
    return lastmem, nv


def att_step(a, mode, groups, final=False, label=None):
    st = Stream()
    single = mode == "single"
    kbuf = [a_x, a_y]
    vbuf = [a_x, a_y] if single else [a_y]
    cend, kdead = {}, {}
    for g, (q, t, nkb, diag) in enumerate(groups):
        for kb in range(nkb):
            s = vr("v", V_S + (g * 4 + kb) * 4)
            c = vr("v", V_ND + (q & 1) * 4) if diag and kb == nkb - 1 else vr("v", V_NM + q * 4)
            for ks in range(4):
                n = st.mfma(f"{MF} {s}, {vr('a', kbuf[t](kb * 4 + ks))}, {vr('v', V_Q + (q * 4 + ks) * 4)}, "
                            f"{c if ks == 0 else s}")
                kdead[(t, kb * 4 + ks)] = n
            cend[(g, kb)] = n
    nqk = len(st.m)
    pstart, vfirst, vdead = {}, {}, {}
    for g, (q, t, nkb, diag) in enumerate(groups):
        nks = (nkb + 1) // 2
        l = vr("v", V_L + q * 4)
        for db in range(8):
            o = vr("a", a_o(q * 8 + db))
            for ks in range(nks):
                n = st.mfma(f"{MF} {o}, {vr('a', vbuf[t](db * 2 + ks))}, {vr('v', V_P + (g * 2 + ks) * 4)}, {o}")
                pstart.setdefault((g, ks), n)
                vfirst.setdefault((t, db * 2 + ks), n)
                vdead[(t, db * 2 + ks)] = n
        for ks in range(nks):
            st.mfma(f"{MF} {l}, {vr('v', V_ONE)}, {vr('v', V_P + (g * 2 + ks) * 4)}, {l}")
    nm = len(st.m)
    for g, (q, t, nkb, diag) in enumerate(groups):
        for kb in range(nkb):
            dl = pstart[(g, kb >> 1)] - 2
            s = V_S + (g * 4 + kb) * 4
            ex = [st.put(f"v_exp_f32 v{s + r}, v{s + r}", cend[(g, kb)] + 5, dl - 1) for r in range(4)]
            for h in range(2):
                st.put(f"v_cvt_pk_bf16_f32 v{V_P + (g * 2 + (kb >> 1)) * 4 + (kb & 1) * 2 + h}, v{s + 2 * h}, v{s + 2 * h + 1}",
                       cend[(g, kb)] + 6, dl, after=ex[2 * h:2 * h + 2], dist=1)
        if nkb & 1:
            for h in range(2):
                st.put(f"v_mov_b32 v{V_P + (g * 2 + (nkb >> 1)) * 4 + 2 + h}, 0", 0, pstart[(g, nkb >> 1)] - 2)

    def half(g0, reads, last_gap, vm=16, extra=None, toks=()):
        w = st.put("", g0, g0, tok_r=toks) if toks else None
        w = st.put("s_waitcnt vmcnt(%d) lgkmcnt(0)" % vm, g0, g0, after=w)
        gb = g0 + 1 if g0 >= 0 else g0
        bar = st.put("s_barrier", gb, gb, after=w)
        its = [st.put(t, max(lo, g0 + 1), max(hi, g0 + 2), after=[bar] + list(aft)) for t, lo, hi, aft in reads]
        if extra is None:
            extra = [("s_add_u32 s28, s32, 0x8000", None), ("s_and_b32 m0, s28, 0x1ffff", None)]
            for k in range(8):
                if k == 4:
                    extra.append(("s_and_b32 m0, s33, 0x1ffff", None))
                extra.append((f"buffer_load_dwordx4 v1, {S(SRD_KV)}, {'s28' if k < 4 else 's33'} offen offset:{(k & 3) * 1024} sc1 lds", None))
            extra += [("s_mov_b32 s32, s33", None), ("s_add_u32 s33, s33, s36", None), ("s_xor_b32 s36, s36, 0x8000", None)]
        _, nv = chain(st, extra, g0 + 4, last_gap - 4, bar)
        return its, nv

    def vreads(t, reg, off):
        out = []
        for db in range(8):
            for ks in range(2):
                f = db * 2 + ks
                if (t, f) not in vfirst:
                    continue
                lo = kdead.get((t, f), -1) + 1 if single else 0
                out.append((f"ds_read_b128 {vr('a', vbuf[t](f))}, {reg} offset:{off + (ks * 8 + db) * 1024}",
                            lo, vfirst[(t, f)] - 7, ()))
        return out

    def kreads(buf, reg, off, dead, hi, aft=(), only=None):
        return [(f"ds_read_b128 {vr('a', buf(f))}, {reg} offset:{off + f * 1024}", dead(f) + 1, hi(f), aft)
                for f in range(16) if only is None or f in only]

    if single:
        need_b = {f for (t, f) in kdead if t == 1}
        firstb = {}
        n = 0
        for g, (q, t, nkb, diag) in enumerate(groups):
            for f in range(nkb * 4):
                if t == 1:
                    firstb.setdefault(f, n)
                n += 1
        r0 = kreads(a_y, "v2", 0x4000, lambda f: -1, lambda f: firstb[f] - 7, only=need_b) + vreads(0, "v2", 0x8000)
        r1 = vreads(1, "v2", 0xc000)
        if final:
            pl = f"buffer_load_dword v11, off, {S(SRD_WS)}, s35 sc1"
            pld = st.put(pl, -1)
            _, nv = half(-1, r0, nqk, extra=p4_dma("OW0", True), vm=17)
            cmp_, br, lab = poll_text(pl, "v11", 8, "s3h%d" % final)
            p = st.put(cmp_, nqk - 6, nqk - 6, after=pld)
            st.put(lab, nqk - 2, nqk - 2, after=p, pre=br)
            e1 = [("global_load_dword v10, v9, s[52:53]", None)] if OPT.get("touch4", 0) else []
            if OPT.get("touch5", 0):
                e1.append((f"buffer_load_dword v10, v4, {S(SRD_WS)}, s39 offen", None))
            e1 += [(t, None) for t in p4_aload(0)] + p4_dma("OW1", True)
            half(nqk - 1, r1, nm + 2, vm=9 + nv, extra=e1)
        else:
            half(0, r0, nqk)
            x = st.put("v_xor_b32 v3, 0x10000, v2", 0, nqk)
            r1 += kreads(a_x, "v3", 0, lambda f: vdead[(0, f)], lambda f: nm - 12 + (f >> 2) * 2, aft=[x])
            its, _ = half(nqk - 1, r1, nm)
            st.put("v_mov_b32 v2, v3", nm - 3, nm - 1, after=its + [x])
    else:
        voff = 0xc000 if mode == "dualB" else 0x8000
        dead = lambda f: kdead.get((0, f), -1)
        hi = lambda f: nm - 12 + (f >> 2) * 2
        if mode == "dualA":
            half(0, vreads(0, "v2", voff) + kreads(a_x, "v2", 0x4000, dead, hi), nm)
        elif mode == "dualB":
            x = st.put("v_xor_b32 v3, 0x10000, v2", 0, nqk - 20)
            its, _ = half(0, vreads(0, "v2", voff) + kreads(a_x, "v3", 0, dead, hi, aft=[x]), nm, toks=["H"])
            st.put("v_mov_b32 v2, v3", nm - 3, nm - 1, after=its + [x])
        else:
            its, _ = half(0, vreads(0, "v2", voff) + kreads(a_x, "v3", 0, dead, hi), nm)
            p = st.put("v_mov_b32 v2, v3", nm - 4, nm - 3, after=its)
            p = st.put("v_add_u32 v3, s37, v3", nm - 4, nm - 2, after=p)
            st.put("v_and_b32 v3, 0x1ffff, v3", nm - 4, nm - 1, after=p)
            st.put("s_xor_b32 s37, s37, 0x8000", nm - 2, nm - 2, after=p)
    if label:
        st.put("s_sub_u32 s35, s35, 1", nm - 8, nm - 6)
        a(".p2align 3")
        a(label + ":")
    over = st.emit(a, search=True)
    return over, nm


def att_diag_bias(a, q0):
    a(f"v_mov_b32 v{V_T}, 0xf149f2ca")
    for h in range(2):
        for r in range(4):
            a(f"v_cndmask_b32 v{V_ND + h * 4 + r}, v{V_T}, v{V_NM + (q0 + h) * 4}, s[{S_MASK + 2 * r}:{S_MASK + 2 * r + 1}]")


def att_check(a, q0):
    for q in (q0, q0 + 1):
        l = V_L + q * 4
        a(f"v_cmp_nlt_f32 vcc, 0x21800000, v{l}")
        a(f"v_cmp_ngt_f32 s[28:29], v{V_T + 1}, v{l}")
        a(f"v_rcp_f32 v{l}, v{l}")
        a("s_or_b64 s[62:63], s[62:63], vcc")
        a("s_or_b64 s[62:63], s[62:63], s[28:29]")


def att_finish(a, q0, mix=()):
    mix = list(mix)
    held = []
    a(f"s_lshl_b32 s29, {S_HL}, 12")
    a(f"s_add_u32 s29, s29, {14 * 1024}")
    for q in (q0, q0 + 1):
        l = V_L + q * 4
        a(f"s_add_u32 s30, s{48 + q}, s29")
        for dp in range(4):
            x = V_T + (dp & 1) * 12
            for k in range(8):
                a(f"v_accvgpr_read_b32 v{x + k}, a{a_o(q * 8 + dp * 2) + k}")
                while mix and k in (0, 4):
                    t, tok = mix.pop(0)
                    a(t, tok_w=[tok] if tok else ())
                    if t.startswith("buffer"):
                        break
            for k in range(0, 8, 2):
                a(f"v_pk_mul_f32 v[{x + k}:{x + k + 1}], v[{x + k}:{x + k + 1}], v[{l}:{l + 1}] op_sel_hi:[1,0]")
            for k in range(4):
                a(f"v_cvt_pk_bf16_f32 v{x + 8 + k}, v{x + 2 * k}, v{x + 2 * k + 1}")
            a(f"buffer_store_dwordx4 {vr('v', x + 8)}, v1, {S(SRD_WS)}, s30 offen offset:{dp * 1024} sc1", tok_w=["CTX"])
    for t, tok in mix:
        a(t, tok_w=[tok] if tok else ())


def rowmax_to_negm(a, src):
    for sw in ("v_permlane16_swap_b32", "v_permlane32_swap_b32"):
        for q in range(4):
            a(f"v_mov_b32 v{V_T + q}, v{src(q)}")
        for q in range(4):
            a(f"{sw} v{src(q)}, v{V_T + q}")
        for q in range(4):
            a(f"v_max_f32 v{src(q)}, v{src(q)}, v{V_T + q}")
    for q in range(4):
        for r in range(4):
            a(f"v_sub_f32 v{V_NM + q * 4 + r}, 0, v{src(q)}")


def p4_scalars(a):
    a(f"s_sub_u32 s28, 15, {S_I}")
    a(f"s_bitcmp1_b32 {S_HL}, 0 ;scc")
    a(f"s_cselect_b32 s29, s28, {S_I}")
    a("s_lshl_b32 s29, s29, 3")
    a(f"s_lshl_b32 s30, {S_W}, 1")
    a("s_add_u32 s29, s29, s30")
    a(f"s_mul_i32 s29, s29, {A_RB}")
    a(f"s_mul_i32 s30, {S_J}, {46 * 1024}")
    a("s_add_u32 s29, s29, s30")
    a(f"s_add_u32 s46, s29, {WS_A}")
    a(f"s_add_u32 s47, s46, {A_RB}")
    a(f"s_mul_i32 s29, {S_W}, {16 * 1280}")
    a(f"s_lshr_b32 s30, {S_HL}, 1")
    a("s_mul_i32 s30, s30, 320")
    a("s_add_u32 s29, s29, s30")
    a(f"s_mul_i32 s30, {S_J}, 7")
    a("s_min_u32 s30, s30, 20")
    a("s_mul_i32 s30, s30, 81920")
    a("s_add_u32 s44, s29, s30")
    a(f"s_mul_i32 s30, {S_J}, {16 * 81920}")
    a("s_add_u32 s45, s29, s30")
    a(f"s_sub_u32 s45, s45, {5 * 81920}")
    a("s_mov_b32 s97, 2")
    a(f"s_mul_i32 s0, {S_W}, 5120")
    a(f"s_add_u32 s1, s0, {8 * P4_ST}")
    a("s_bitcmp1_b32 s28, 0 ;scc")
    a(f"s_cselect_b32 s29, 0, {4 * P4_ST}")
    a("s_add_u32 s96, s0, s29")
    a(f"s_mov_b32 s{SRD_AA + 2}, {WS_SIZE}")


def touch_job(a):
    if OPT.get("touch4", 0):
        a("global_load_dword v10, v9, s[52:53]" + NTT())
    for k in range(4):
        a(f"s_mov_b64 s[{52 + 2 * k}:{53 + 2 * k}], s[{54 + 2 * k}:{55 + 2 * k}]")
    a("s_sub_u32 s39, s39, 1")


def phase3(a):
    info = []
    a("s_mov_b32 s38, 0")
    a("v_bfe_u32 v7, v0, 4, 2")
    a("v_and_b32 v8, 15, v0")
    a("v_lshlrev_b32 v7, 2, v7")
    for r in range(4):
        a(f"v_add_u32 v9, {r}, v7")
        a(f"v_cmp_le_u32 s[{S_MASK + 2 * r}:{S_MASK + 2 * r + 1}], v9, v8")
    for r in range(4):
        a(f"v_mov_b32 v{V_ONE + r}, 0x3f803f80")
    a("v_and_b32 v11, 63, v0")
    for p in range(5):
        a(f"v_add_u32 v7, {64 * p}, v11")
        a("v_mul_u32_u24 v8, 0xccd, v7")
        a("v_lshrrev_b32 v8, 16, v8")
        a("v_mul_u32_u24 v14, 20, v8")
        a("v_sub_u32 v7, v7, v14")
        a("v_bfe_u32 v14, v8, 2, 1")
        a("v_lshlrev_b32 v14, 1, v14")
        a("v_xor_b32 v7, v7, v14")
        a("v_mul_u32_u24 v8, 0x500, v8")
        a("v_lshl_add_u32 v7, v7, 4, v8")
        a(f"v_subrev_u32 v{V4_DM + p}, {1024 * p if p < 4 else 0}, v7")
    a("v_lshlrev_b32 v9, 3, v1")
    srd(a, SRD_W2, 8, 2211840)
    srd(a, SRD_WO, 5, 5242880)
    srd(a, SRD_AA, 11, WS_SIZE)
    a(f"s_mov_b32 s{SRD_CUR + 3}, 0x20000")
    a("s_lshr_b32 s28, s2, 3")
    a("s_lshl_b32 s28, s28, 2")
    a(f"s_add_u32 s28, s28, {S_W}")
    a(f"s_mul_i32 s29, {S_J}, 7")
    a("s_min_u32 s29, s29, 20")
    a("s_mul_i32 s29, s29, 81920")
    a("s_mul_i32 s30, s28, 4480")
    a("s_min_u32 s30, s30, 565248")
    a("s_add_u32 s29, s29, s30")
    a(f"s_add_u32 s52, s{PTR + 16}, s29\ns_addc_u32 s53, s{PTR + 17}, 0")
    a(f"s_mul_i32 s29, {S_J}, {16 * 81920}")
    a("s_mul_i32 s30, s28, 10240")
    a("s_add_u32 s29, s29, s30")
    a(f"s_add_u32 s56, s{PTR + 10}, s29\ns_addc_u32 s57, s{PTR + 11}, 0")
    a("s_add_u32 s58, s56, 2048\ns_addc_u32 s59, s57, 0")
    a(f"s_lshr_b32 s28, {S_W}, 1")
    a(f"s_lshl_b32 s29, {S_HL}, 1")
    a("s_add_u32 s28, s28, s29")
    a("s_and_b32 s29, s28, 7")
    a(f"s_sub_u32 s30, 15, {S_I}")
    a("s_cmp_ge_u32 s28, 8")
    a(f"s_cselect_b32 s30, s30, {S_I}")
    a("s_lshl_b32 s30, s30, 3")
    a("s_add_u32 s29, s29, s30")
    a(f"s_mul_i32 s29, s29, {A_RB}")
    a(f"s_mul_i32 s30, {S_J}, {46 * 1024}")
    a("s_add_u32 s29, s29, s30")
    a(f"s_and_b32 s30, {S_W}, 1")
    a("s_mul_i32 s30, s30, 6144")
    a("s_add_u32 s29, s29, s30")
    a(f"s_add_u32 s29, s29, {WS_A}")
    a(f"s_add_u32 s60, s{PTR + 22}, s29\ns_addc_u32 s61, s{PTR + 23}, 0")
    a("s_mov_b64 s[54:55], s[56:57]\ns_mov_b64 s[56:57], s[58:59]\ns_mov_b64 s[58:59], s[60:61]")
    a("L_att:")
    a("s_mov_b32 s39, 3")
    a(f"v_mov_b32 v7, {LDS_FLAG}")
    a("v_mov_b32 v8, 0")
    a("ds_write_b32 v7, v8")
    a("s_mov_b64 s[62:63], 0")
    a("s_add_u32 s32, s34, 0x14000")
    a("s_add_u32 s33, s34, 0x20000")
    a("s_mov_b32 s36, 0x4000")
    a("s_mov_b32 s37, 0xc000")
    a("v_mov_b32 v2, v1")
    a("v_add_u32 v3, 0x4000, v1")
    for r in range(16):
        a(f"v_mov_b32 v{V_L + r}, 0")
    stamp(a, 8)
    a.need("K0")
    a("s_barrier")
    stamp(a, 9)
    for f in range(16):
        a(f"ds_read_b128 {vr('a', a_x(f))}, v2 offset:{f * 1024}")
    kv_first(a, KV_FIRST[5:])
    a("s_cmp_lg_u32 s38, 0")
    a("s_cbranch_scc1 L_att_go")
    for q in range(4):
        for ks in range(4):
            s = vr("v", V_S + q * 4)
            a(f"{MF} {s}, {vr('a', a_x(ks))}, {vr('v', V_Q + (q * 4 + ks) * 4)}, {'0' if ks == 0 else s}")
    for q in range(4):
        s = V_S + q * 4
        a(f"v_max3_f32 v{s}, v{s}, v{s + 1}, v{s + 2}")
        a(f"v_max_f32 v{s}, v{s}, v{s + 3}")
    rowmax_to_negm(a, lambda q: V_S + q * 4)
    a("L_att_go:")
    att_diag_bias(a, 2)
    stamp(a, 10)
    full = lambda q, t=0: (q, t, 4, False)
    a(f"s_lshl_b32 s35, {S_I}, 1")
    a("s_cmp_eq_u32 s35, 0")
    a("s_cbranch_scc1 L_att_d")
    info.append(att_step(a, "dual", [full(0), full(1), full(2), full(3)], label="L_att_dual"))
    a("s_cmp_lg_u32 s35, 0")
    a("s_cbranch_scc1 L_att_dual")
    a("L_att_d:")
    stamp(a, 11)
    if OPT.get("touch6", 1):
        a(f"s_cmp_ge_u32 {S_I}, 4")
        a("s_cbranch_scc1 L_att_t6")
        a(f"s_lshl_b32 s28, {S_H}, 2")
        a(f"s_add_u32 s28, s28, {S_I}")
        a("s_lshl_b32 s28, s28, 2")
        a(f"s_add_u32 s28, s28, {S_W}")
        a("s_mul_i32 s29, s28, 4352")
        a(f"buffer_load_dword v10, v9, {S(SRD_W2)}, s29 offen")
        a("s_mul_i32 s29, s28, 10240")
        a(f"buffer_load_dword v10, v9, {S(SRD_WO)}, s29 offen")
        a(f"buffer_load_dword v10, v9, {S(SRD_WO)}, s29 offen offset:2048")
        a("L_att_t6:")
    for w in range(4):
        if w < 3:
            a(f"s_cmp_lg_u32 {S_W}, {w}")
            a(f"s_cbranch_scc1 L_att_d{w + 1}")
        info.append(att_step(a, "dualA", [full(0), full(3), (2, 0, w + 1, True), full(1)]))
        info.append(att_step(a, "dualB", [full(0), (3, 0, 4 - w, True), full(1)]))
        if w < 3:
            a("s_branch L_att_dd")
            a(f"L_att_d{w + 1}:")
    a("L_att_dd:")
    stamp(a, 12)
    a(f"s_lshl_b32 s28, {S_J}, 3")
    a(f"s_add_u32 s28, s28, {S_I}")
    a(f"s_add_u32 s28, s28, {C_H}")
    sig_off(a, "s29", "s28")
    a("s_cmp_eq_u32 s38, 0")
    a(f"s_cselect_b32 s29, s29, {OOB}")
    a(sig_text("s29"))
    a(f"v_mov_b32 v{V_T + 1}, 0x5d800000")
    att_check(a, 2)
    att_finish(a, 2)
    att_diag_bias(a, 0)
    p4_scalars(a)
    stamp(a, 13)
    a(f"s_lshl_b32 s35, {S_I}, 1")
    a("s_sub_u32 s35, 14, s35")
    a("L_att_j:")
    a("s_cmp_le_u32 s39, s35")
    a("s_cbranch_scc1 L_att_jx")
    touch_job(a)
    a("s_branch L_att_j")
    a("L_att_jx:")
    a("s_cmp_eq_u32 s35, 0")
    a("s_cbranch_scc1 L_att_e")
    info.append(att_step(a, "single", [full(0), full(1), full(0, 1), full(1, 1)], label="L_att_single"))
    a("s_cmp_ge_u32 s35, s39")
    a("s_cbranch_scc1 L_att_single")
    touch_job(a)
    a("s_cmp_lg_u32 s35, 0")
    a("s_cbranch_scc1 L_att_single")
    a("L_att_e:")
    stamp(a, 14)
    a(f"s_lshl_b32 s28, {S_J}, 3")
    a(f"s_add_u32 s28, s28, {S_I}")
    a(f"s_add_u32 s28, s28, {C_H}")
    a("s_lshl_b32 s35, s28, 7")
    a(f"s_lshl_b32 s29, {S_HL}, 12")
    a(f"s_add_u32 s29, s29, {14 * 1024}")
    a("s_sub_u32 s30, s51, s50")
    a("s_sub_u32 s30, s30, 4096")
    a("v_mov_b32 v14, s30")
    a("v_cmp_lt_u32 vcc, 0xf80, v9")
    a("s_add_u32 s39, s50, s29")
    a("v_cndmask_b32 v14, 0, v14, vcc")
    a("v_add_u32 v4, v9, v14")
    for w in range(4):
        if w < 3:
            a(f"s_cmp_lg_u32 {S_W}, {w}")
            a(f"s_cbranch_scc1 L_att_e{w + 1}")
        info.append(att_step(a, "single", [full(1), (0, 0, w + 1, True), (1, 1, 4 - w, True)], final=w + 1))
        if w < 3:
            a("s_branch L_att_ee")
            a(f"L_att_e{w + 1}:")
    a("L_att_ee:")
    stamp(a, 15)
    a(f"v_mov_b32 v{V_T + 1}, 0x5d800000")
    att_check(a, 0)
    a("s_cmp_lg_u64 s[62:63], 0")
    a("s_cselect_b32 s28, 1, 0")
    a(f"v_mov_b32 v7, {LDS_FLAG}")
    a("v_mov_b32 v8, s28")
    a("ds_or_b32 v7, v8")
    mix = [(t, None) for t in p4_aload(1)] + P4_SEL
    att_finish(a, 0, mix)
    a.need("OW0")
    a("s_waitcnt lgkmcnt(0)")
    a("s_barrier")
    a("ds_read_b32 v8, v7")
    a("v_bfe_u32 v11, v0, 2, 4")
    a("v_mul_u32_u24 v11, 0x140, v11")
    a("v_and_b32 v14, 3, v0")
    a("v_lshl_add_u32 v11, v14, 3, v11")
    a(f"s_bitcmp1_b32 {S_I}, 0 ;scc")
    a(f"s_mov_b32 s33, {4 * P4_ST}")
    a("s_cselect_b32 s28, s33, 0")
    a(f"s_cselect_b32 s33, {-4 * P4_ST & 0xffffffff}, s33")
    a("v_add_u32 v11, s28, v11")
    a("v_bfe_u32 v14, v0, 4, 1")
    a("v_lshlrev_b32 v14, 5, v14")
    a(f"v_add_u32 v{V4_RD}, v11, v14")
    a("v_xor_b32 v14, 32, v14")
    a(f"v_add_u32 v{V4_RD + 1}, v11, v14")
    a(f"v_add_u32 v{V4_RD + 2}, {2 * P4_ST}, v{V4_RD}")
    a(f"v_add_u32 v{V4_RD + 3}, {2 * P4_ST}, v{V4_RD + 1}")
    a("v_readfirstlane_b32 s28, v8")
    a("s_cmp_gt_u32 s28, s38")
    a("s_cbranch_scc1 L_att_redo")
    b = Asm()
    b("L_att_redo:")
    b("s_mov_b32 s38, 1")
    rowblocks(b, 44, 16, 0)
    b("v_and_b32 v8, 15, v0")
    b("v_bfe_u32 v7, v0, 4, 2")
    b("v_lshlrev_b32 v7, 2, v7")
    for q in range(4):
        b(f"v_add_u32 v{V_P + q}, s{44 + q}, v8")
        b(f"v_mov_b32 v{V_P + 4 + q}, 0xf149f2ca")
    b(f"s_sub_u32 s35, 16, {S_I}")
    b("s_lshl_b32 s35, s35, 3")
    b("s_mov_b32 s39, 0")
    b("L_att_max:")
    b("s_lshr_b32 s28, s39, 3")
    b("s_lshl_b32 s28, s28, 16")
    b("s_and_b32 s29, s39, 7")
    b("s_lshl_b32 s29, s29, 12")
    b("s_add_u32 s28, s28, s29")
    for ks in range(4):
        b(f"buffer_load_dwordx4 {vr('a', a_x(ks))}, v1, {S(SRD_KV)}, s28 offen offset:{ks * 1024} sc1")
    b("s_waitcnt vmcnt(0)")
    for q in range(4):
        for ks in range(4):
            s = vr("v", V_S + q * 4)
            b(f"{MF} {s}, {vr('a', a_x(ks))}, {vr('v', V_Q + (q * 4 + ks) * 4)}, {'0' if ks == 0 else s}")
    for r in range(4):
        b(f"v_add_u32 v14, {r}, v7")
        for q in range(4):
            b(f"v_cmp_le_u32 vcc, v14, v{V_P + q}")
            b(f"v_max_f32 v10, v{V_P + 4 + q}, v{V_S + q * 4 + r}")
            b(f"v_cndmask_b32 v{V_P + 4 + q}, v{V_P + 4 + q}, v10, vcc")
    b("v_add_u32 v7, 16, v7")
    b("s_add_u32 s39, s39, 1")
    b("s_cmp_lt_u32 s39, s35")
    b("s_cbranch_scc1 L_att_max")
    rowmax_to_negm(b, lambda q: V_P + 4 + q)
    for n in range(32):
        for k in range(4):
            b(f"v_accvgpr_write_b32 a{a_o(n) + k}, 0")
    b("s_barrier")
    kv_first(b, KV_FIRST[:5])
    b("s_branch L_att")
    SLOW.append(b)
    print("attention steps (overflow slots, mfmas):", info, file=sys.stderr)


def p4_acc(cb, r):
    return P4_ACC + (r * 10 + cb) * 4


def p4_wread(sub, cb, ks, hf):
    reg = V4_RD + (cb & 1) + (2 if sub >= 2 else 0)
    off = (sub & 1) * P4_ST + ks * 10240 + hf * 5120 + (cb >> 1) * 64
    return f"ds_read_b64_tr_b16 {vr('a', (cb % 5) * 8 + ks * 4 + hf * 2, 2)}, v{reg} offset:{off}"


def phase4(a):
    for cb in range(3):
        for ks in range(2):
            for hf in range(2):
                a(p4_wread(0, cb, ks, hf))
    a(f"s_lshl_b32 s28, {S_J}, 3")
    a(f"s_add_u32 s28, s28, {S_I}")
    a(f"s_add_u32 s28, s28, {C_CTX}")
    a("s_lshl_b32 s35, s28, 7")
    sig_off(a, "s36", "s28")
    a(f"s_lshl_b32 s29, {S_HL}, 12")
    a(f"s_add_u32 s29, s29, {14 * 1024}")
    a("s_add_u32 s37, s48, s29")
    for r in range(P4_ACC, P4_ACC + 80):
        a(f"v_mov_b32 v{r}, 0")
    a("s_mov_b32 s32, 0")
    stamp(a, 16)
    a(".p2align 3")
    a("L_p4:")
    over = 0
    pl = f"buffer_load_dword v11, off, {S(SRD_WS)}, s35 sc1"
    for sub in range(4):
        st = Stream()
        for cb in range(10):
            for r in range(2):
                c = vr("v", p4_acc(cb, r))
                for ks in range(2):
                    st.mfma(f"{MF} {c}, {vr('a', (cb % 5) * 8 + ks * 4)}, {vr('v', P4_A[sub][r * 2 + ks])}, {c}")
        last = None
        for cb in range(3, 10):
            for k in range(4):
                last = st.put(p4_wread(sub, cb, k >> 1, k & 1), 4 * (cb - 3) + k, 4 * (cb - 3) + k + 1)
        nb = st.put("", 26, 26, tok_r=["OW%d" % ((sub + 1) & 3)] + (["CTX"] if sub == 2 else []))
        bar = st.put("s_barrier", 27, 27, after=nb)
        tog = []
        if sub == 3:
            tog = [st.put(f"v_add_u32 v{V4_RD + k}, s33, v{V4_RD + k}", 2 + 2 * k, 12) for k in range(2)]
            tog2 = [st.put(f"v_add_u32 v{V4_RD + 2 + k}, s33, v{V4_RD + 2 + k}", 30, 36, after=last) for k in range(2)]
            st.put("s_sub_u32 s33, 0, s33", 37, 38, after=tog2)
        for cb in range(3):
            for k in range(4):
                st.put(p4_wread((sub + 1) & 3, cb, k >> 1, k & 1), 28 + 4 * cb + k, min(39, 29 + 4 * cb + k), after=[bar] + tog)
        p, _ = chain(st, p4_dma("OW%d" % ((sub + 2) & 3)), 2, 22, None, tail=36)
        if sub == 2:
            st.put("L_c2b:", 28, 28, after=bar, pre="s_cmp_eq_u32 s32, 2\ns_cbranch_scc1 L_c2")
            b = Asm()
            b("L_c2:")
            b(sig_text("s36"))
            if OPT.get("touch4", 0):
                b(f"buffer_load_dword v10, v4, {S(SRD_WS)}, s37 offen")
            b("s_branch L_c2b")
            SLOW.append(b)
        if sub == 1:
            p = st.put("L_c0b:", 21, 21, after=p, pre="s_cmp_eq_u32 s32, 5\ns_cbranch_scc1 L_c0")
            b = Asm()
            b("L_c0:")
            cmp_, br, lab = poll_text(pl, "v11", 8, "s3c")
            b(cmp_)
            b(br)
            b(lab)
            b("s_branch L_c0b")
            SLOW.append(b)
        if sub == 0:
            st.put("L_c3b:", 33, 33, pre="s_cmp_eq_u32 s32, 4\ns_cbranch_scc1 L_c3")
            b = Asm()
            b("L_c3:")
            b(pl)
            b("s_branch L_c3b")
            SLOW.append(b)
        c = st.put(f"s_cselect_b32 s{SRD_AA + 2}, {WS_SIZE}, 0", 18, 20, pre="s_cmp_lt_u32 s32, 21")
        chain(st, [(t, None) for t in p4_aload(sub + 2)], 23, 39, [p, c])
        st.put("s_add_u32 s32, s32, 1", 37, 38)
        over += st.emit(a)
        a("s_cmp_lt_u32 s32, 23")
        a("s_cbranch_scc0 L_p4_x" if sub < 3 else "s_cbranch_scc1 L_p4")
    a("L_p4_x:")
    print("p4 overflow", over, file=sys.stderr)
    stamp(a, 17)
    srd(a, 16, 0, 2621440)
    srd(a, 20, 9, 2621440)
    a("v_and_b32 v2, 15, v0")
    a("v_mul_u32_u24 v2, 0x500, v2")
    a("v_bfe_u32 v3, v0, 4, 2")
    a("v_lshl_add_u32 v2, v3, 3, v2")
    a("v_lshrrev_b32 v3, 1, v1")
    a(f"s_sub_u32 s28, 15, {S_I}")
    a(f"s_bitcmp1_b32 {S_HL}, 0 ;scc")
    a(f"s_cselect_b32 s34, s28, {S_I}")
    a(f"s_lshr_b32 s35, {S_HL}, 1")
    a("s_lshl_b32 s28, s34, 3")
    a(f"s_lshl_b32 s29, {S_W}, 1")
    a("s_add_u32 s28, s28, s29")
    a(f"s_and_b32 s29, {S_J}, 1")
    a("s_add_u32 s28, s28, s29")
    a(f"s_mul_i32 s32, s28, {16 * 1280}")
    a("s_mul_i32 s28, s35, 320")
    a("s_add_u32 s32, s32, s28")
    a(f"s_lshr_b32 s28, {S_J}, 1")
    a("s_mul_i32 s28, s28, 160")
    a("s_add_u32 s32, s32, s28")
    for k in range(5):
        a(f"buffer_load_dwordx2 {vr('v', 100 + 2 * k, 2)}, v2, {S(16)}, s32 offen offset:{32 * k}")
    a("s_lshl_b32 s33, s34, 2")
    a("s_add_u32 s33, s33, s35")
    a(f"s_mul_i32 s34, s33, {16 * 10240}")
    a(f"s_mul_i32 s28, {S_W}, 2560")
    a("s_add_u32 s34, s34, s28")
    a(f"s_add_u32 s34, s34, {WS_EX}")
    a(f"s_mul_i32 s28, {S_J}, 10240")
    a("s_add_u32 s35, s34, s28")
    a(f"s_mul_i32 s28, {S_J}, 40960")
    a("s_add_u32 s34, s34, s28")
    a(f"s_add_u32 s33, s33, {C_EX}")
    sig_off(a, "s36", "s33")
    a("s_lshl_b32 s33, s33, 7")
    for j in range(4):
        if j < 3:
            a(f"s_cmp_lg_u32 {S_J}, {j}")
            a(f"s_cbranch_scc1 L_ex{j + 1}")
        for o in range(4):
            if o == j:
                continue
            d = 16 + o * 12
            for k in range(5):
                s = p4_acc(5 * (o >> 1) + k, o & 1)
                for e in range(2):
                    a(f"v_cvt_pk_bf16_f32 v{d + 2 * k + e}, v{s + 2 * e}, v{s + 2 * e + 1}")
            a(f"s_add_u32 s28, s35, {o * 40960}")
            a(f"buffer_store_dwordx4 {vr('v', d)}, v1, {S(SRD_WS)}, s28 offen sc1")
            a(f"buffer_store_dwordx4 {vr('v', d + 4)}, v1, {S(SRD_WS)}, s28 offen offset:1024 sc1")
            a(f"buffer_store_dwordx2 {vr('v', d + 8, 2)}, v3, {S(SRD_WS)}, s28 offen offset:2048 sc1")
        for k in range(5):
            s = p4_acc(5 * (j >> 1) + k, j & 1)
            for e in range(4):
                a(f"v_and_b32 v14, 0xffff0000, v{100 + 2 * k + (e >> 1)}" if e & 1 else
                  f"v_lshlrev_b32 v14, 16, v{100 + 2 * k + (e >> 1)}")
                a(f"v_add_f32 v{64 + 4 * k + e}, v{s + e}, v14")
        if j < 3:
            a("s_branch L_exs")
            a(f"L_ex{j + 1}:")
    a("L_exs:")
    a("s_waitcnt vmcnt(0)")
    a("s_barrier")
    a(sig_text("s36"))
    stamp(a, 18)
    a("s_mov_b32 s30, 40000")
    a("L_exp:")
    a(f"buffer_load_dword v11, off, {S(SRD_WS)}, s33 sc1")
    a("s_sub_u32 s30, s30, 1")
    a("v_cmp_gt_u32 vcc, 4, v11")
    a("s_cmp_eq_u32 s30, 0")
    a("s_cbranch_scc1 L_expx")
    a("s_cbranch_vccnz L_exp")
    a("L_expx:")
    stamp(a, 19)
    for n in range(3):
        a(f"s_add_u32 s28, {S_J}, {n + 1}")
        a("s_and_b32 s28, s28, 3")
        a("s_mul_i32 s28, s28, 10240")
        a("s_add_u32 s28, s28, s34")
        d = 16 + n * 12
        a(f"buffer_load_dwordx4 {vr('v', d)}, v1, {S(SRD_WS)}, s28 offen sc1")
        a(f"buffer_load_dwordx4 {vr('v', d + 4)}, v1, {S(SRD_WS)}, s28 offen offset:1024 sc1")
        a(f"buffer_load_dwordx2 {vr('v', d + 8, 2)}, v3, {S(SRD_WS)}, s28 offen offset:2048 sc1")
    for n in range(3):
        for k in range(10):
            a(f"v_lshlrev_b32 v14, 16, v{16 + n * 12 + k}")
            a(f"v_and_b32 v11, 0xffff0000, v{16 + n * 12 + k}")
            a(f"v_add_f32 v{64 + 2 * k}, v{64 + 2 * k}, v14")
            a(f"v_add_f32 v{65 + 2 * k}, v{65 + 2 * k}, v11")
    for k in range(5):
        for e in range(2):
            a(f"v_cvt_pk_bf16_f32 v{112 + 2 * k + e}, v{64 + k * 4 + 2 * e}, v{64 + k * 4 + 2 * e + 1}")
        a(f"buffer_store_dwordx2 {vr('v', 112 + 2 * k, 2)}, v2, {S(20)}, s32 offen offset:{32 * k}")


def build(path):
    a = Asm()
    entry(a)
    phase1_start(a)
    a(f"s_cmp_ge_u32 {S_W}, 2")
    a("s_cbranch_scc1 L_p1_vw")
    o = [phase1_iter(a, False, "k", 0)]
    stamp(a, 5)
    o += [phase1_iter(a, False, "k", 6), phase1_iter(a, False, "k", 7)]
    a("s_branch L_p2")
    a("L_p1_vw:")
    o.append(phase1_iter(a, True, "v", 0))
    stamp(a, 5)
    o += [phase1_iter(a, True, "v", 6), phase1_iter(a, True, "v", 7)]
    print("p1 overflow", o, file=sys.stderr)
    a("L_p2:")
    stamp(a, 6)
    phase2(a)
    phase3(a)
    phase4(a)
    stamp_dump(a)
    a("s_endpgm")
    for b in SLOW:
        a.ins += b.ins
    a("L_end:")
    a("s_endpgm")
    insert_waits(a)
    k = check_hazards(a, fix=True)
    check_scc(a)
    print("instructions", len(a.ins), "hazard pads", k, file=sys.stderr)
    head = open("cdna_kernels/" + NAME + ".s.ref").read().split("; @launch")[0]
    txt = head + "; @launch grid=(256,1,1) block=(256,1,1) lds=163840\n"
    txt += '.amdgcn_target "amdgcn-amd-amdhsa--gfx950"\n.text\n' + a.text() + f"""
.section .rodata,"a"
.p2align 6
.amdhsa_kernel {KN}
  .amdhsa_next_free_vgpr 512
  .amdhsa_next_free_sgpr 102
  .amdhsa_accum_offset 256
  .amdhsa_group_segment_fixed_size 0
  .amdhsa_kernarg_size 96
  .amdhsa_user_sgpr_count 2
  .amdhsa_user_sgpr_kernarg_segment_ptr 1
  .amdhsa_system_sgpr_workgroup_id_x 1
.end_amdhsa_kernel
"""
    open(path, "w").write(txt)


if __name__ == "__main__":
    OPT.update({k: int(v) for k, v in (kv.split("=") for kv in sys.argv[2:])})
    DIAG = bool(OPT.get("diag", 0))
    build(sys.argv[1])
```

```python
import re

REG_RE = re.compile(r"^(-|\|)?(abs\()?([vas])(?:(\d+)|\[(\d+):(\d+)\])\)?\|?$")
TRANS = ("v_exp_f32", "v_log_f32", "v_rcp_f32", "v_rsq_f32", "v_sqrt_f32", "v_sin_f32", "v_cos_f32")


def regs_of(op):
    op = op.strip()
    if op in ("vcc", "exec", "m0", "scc"):
        return [op]
    if op in ("vcc_lo", "vcc_hi"):
        return ["vcc"]
    m = REG_RE.match(op)
    if not m:
        return []
    k = m.group(3)
    if m.group(4) is not None:
        return [k + m.group(4)]
    return [k + str(i) for i in range(int(m.group(5)), int(m.group(6)) + 1)]


def split_ops(s):
    out, depth, cur = [], 0, ""
    for ch in s:
        if ch in "[(":
            depth += 1
        if ch in "])":
            depth -= 1
        if ch == "," and depth == 0:
            out.append(cur.strip())
            cur = ""
        else:
            cur += ch
    if cur.strip():
        out.append(cur.strip())
    return out


class Ins:
    def __init__(self, text, tok_w=(), tok_r=()):
        self.text = text
        self.tok_w = tuple(tok_w)
        self.tok_r = tuple(tok_r)
        self.w, self.r = [], []
        self.aw = []
        self.cnt = None
        self.target = None
        self.mn = ""
        t = text.split(";")[0].strip()
        if t == "":
            self.kind = "need" if tok_r else "dir"
            return
        if t.endswith(":"):
            self.kind = "label"
            self.name = t[:-1]
            return
        if t.startswith("."):
            self.kind = "dir"
            return
        p = t.split(None, 1)
        mn = p[0]
        self.mn = mn
        rest = p[1] if len(p) > 1 else ""
        ops = split_ops(rest)
        mods = ""
        if ops:
            q = ops[-1].split(None, 1)
            if len(q) > 1 and not ops[-1].startswith("hwreg"):
                ops[-1], mods = q[0], q[1]
        self.ops, self.mods = ops, mods
        R = lambda i: regs_of(ops[i]) if i < len(ops) else []
        base = mn.replace("_e32", "").replace("_e64", "")
        if mn.startswith("v_mfma"):
            self.kind = "mfma"
            self.w = R(0)
            self.ab = R(1) + R(2)
            self.c = R(3)
            self.r = self.ab + self.c
            self.passes = 8 if "32x32" in mn else 4
        elif mn.startswith("v_"):
            self.kind = "trans" if base in TRANS else "valu"
            self.w = R(0)
            self.r = [x for i in range(1, len(ops)) for x in R(i)]
            if base.startswith("v_permlane") and "swap" in base:
                self.w = R(0) + R(1)
                self.r = R(0) + R(1)
            if base in ("v_fmac_f32", "v_dot2c_f32_bf16", "v_writelane_b32"):
                self.r += R(0)
            if base in ("v_add_co_u32", "v_addc_co_u32", "v_sub_co_u32"):
                self.w = R(0) + R(1)
                self.r = [x for i in range(2, len(ops)) for x in R(i)]
            if "dpp" in mn or "row_" in mods or "quad_perm" in mods:
                self.dpp = True
                self.r += R(0)
        elif mn.startswith("ds_"):
            self.kind = "ds"
            self.cnt = "lgkm"
            if mn.startswith("ds_read") or "permute" in mn or "swizzle" in mn:
                self.aw = R(0)
                self.r = [x for i in range(1, len(ops)) for x in R(i)]
            else:
                self.r = [x for i in range(len(ops)) for x in R(i)]
        elif mn.startswith("buffer_") or mn.startswith("global_"):
            self.kind = "vmem"
            self.cnt = "vm"
            allr = lambda a: [x for i in range(a, len(ops)) for x in R(i)]
            if mn in ("buffer_inv", "buffer_wbl2"):
                pass
            elif "load" in mn and (" lds" in " " + mods or "_lds_" in mn):
                self.r = allr(0) + ["m0"]
                self.dma = True
            elif "load" in mn:
                self.aw = R(0)
                self.r = allr(1)
            elif "atomic" in mn and "sc0" in mods:
                self.aw = R(0)
                self.r = allr(0)
            else:
                self.r = allr(0)
                if "store" in mn and ("x4" in mn or "x3" in mn):
                    self.stdata = R(0) if mn.startswith("buffer") else R(1)
        elif mn.startswith("s_load") or mn in ("s_memtime", "s_memrealtime"):
            self.kind = "smem"
            self.cnt = "lgkm"
            self.aw = R(0)
            self.r = [x for i in range(1, len(ops)) for x in R(i)]
        elif mn == "s_waitcnt":
            self.kind = "wait"
            self.vm = self.lgkm = None
            m = re.search(r"vmcnt\((\d+)\)", rest)
            if m:
                self.vm = int(m.group(1))
            m = re.search(r"lgkmcnt\((\d+)\)", rest)
            if m:
                self.lgkm = int(m.group(1))
        elif mn.startswith("s_cbranch") or mn == "s_branch":
            self.kind = "branch"
            self.target = ops[0]
            if "vcc" in mn:
                self.r = ["vcc"]
            if "exec" in mn:
                self.r = ["exec"]
        elif mn == "s_endpgm":
            self.kind = "end"
        elif mn.startswith("s_"):
            self.kind = "salu"
            if mn.startswith("s_cmp") or mn in ("s_nop", "s_barrier", "s_sleep", "s_setprio"):
                self.r = [x for i in range(len(ops)) for x in R(i)]
            else:
                self.w = R(0)
                self.r = [x for i in range(1, len(ops)) for x in R(i)]
                if "saveexec" in mn:
                    self.w += ["exec"]
        else:
            raise ValueError("cannot parse: " + text)

    def states(self):
        if self.kind in ("label", "dir", "need"):
            return 0
        if self.mn == "s_nop":
            return int(self.ops[0], 0) + 1
        return 1


class Asm:
    def __init__(self):
        self.ins = []

    def __call__(self, text, tok_w=(), tok_r=()):
        lines = text.split("\n")
        for ln in lines:
            if ln.strip():
                self.ins.append(Ins(ln.strip(), tok_w, tok_r))

    def need(self, *toks):
        self.ins.append(Ins("", tok_r=toks))

    def add(self, ins):
        self.ins.append(ins)

    def text(self):
        out = []
        for i in self.ins:
            if i.kind == "need":
                continue
            if i.kind == "label" or i.kind == "dir":
                out.append(i.text)
            else:
                out.append("  " + i.text)
        return "\n".join(out) + "\n"


def cfg(ins):
    lab = {i.name: n for n, i in enumerate(ins) if i.kind == "label"}
    succ = []
    for n, i in enumerate(ins):
        s = []
        if i.kind == "end":
            pass
        elif i.kind == "branch":
            s.append(lab[i.target])
            if i.mn != "s_branch":
                s.append(n + 1)
        elif n + 1 < len(ins):
            s.append(n + 1)
        succ.append(s)
    pred = [[] for _ in ins]
    for n, s in enumerate(succ):
        for m in s:
            pred[m].append(n)
    return succ, pred


MAXC = {"vm": 63, "lgkm": 15}
CAP = ["lgkm", "vm"]


def _step(s, i):
    if i.kind == "wait":
        for key in list(s):
            lim = i.vm if key[0] == "vm" else i.lgkm
            if lim is None:
                continue
            if key[1] == "@cnt":
                s[key] = max(s[key], -lim)
            elif s[key] >= lim:
                del s[key]
    if i.cnt:
        c = i.cnt
        for key in s:
            if key[0] == c and key[1] != "@cnt":
                s[key] = min(s[key] + 1, 99)
        s[(c, "@cnt")] = max(s.get((c, "@cnt"), 0) - (2 if i.kind == "smem" else 1), -99)
        if i.kind == "smem":
            s[(c, "@smem")] = 0
        if (c, "@smem") in s:
            for key in s:
                if key[0] == c and key[1] != "@cnt":
                    s[key] = 0
        for r in list(i.aw) + list(i.tok_w):
            s[(c, r)] = 0


def _blocks(ins):
    bl, cur = [], []
    for i in ins:
        if i.kind == "label" and cur:
            bl.append(cur)
            cur = []
        cur.append(i)
        if i.kind in ("branch", "end"):
            bl.append(cur)
            cur = []
    if cur:
        bl.append(cur)
    lab = {b[0].name: n for n, b in enumerate(bl) if b[0].kind == "label"}
    succ = []
    for n, b in enumerate(bl):
        e = b[-1]
        s = []
        if e.kind == "branch":
            s.append(lab[e.target])
            if e.mn != "s_branch":
                s.append(n + 1)
        elif e.kind != "end" and n + 1 < len(bl):
            s.append(n + 1)
        succ.append(s)
    return bl, succ


def _flow(bl, succ):
    st = [None] * len(bl)
    st[0] = {}
    work = [0]
    while work:
        k = work.pop()
        s = dict(st[k])
        for i in bl[k]:
            _step(s, i)
        for m in succ[k]:
            if st[m] is None:
                st[m] = dict(s)
                work.append(m)
            else:
                ch = False
                for key, v in s.items():
                    if key not in st[m] or st[m][key] > v:
                        st[m][key] = v
                        ch = True
                if ch:
                    work.append(m)
    return st


def _fix_block(b, s0, hoist):
    s = dict(s0)
    for k, i in enumerate(b):
        touched = set(i.r) | set(i.w) | set(i.tok_r) | set(i.aw)
        need = {}
        for (c, r), v in s.items():
            if r in touched:
                if r in i.aw and r not in i.r and i.cnt == c and i.kind != "smem":
                    continue
                need[c] = min(need.get(c, 99), v)
        if i.cnt in CAP and -s.get((i.cnt, "@cnt"), 0) >= MAXC[i.cnt]:
            need[i.cnt] = min(need.get(i.cnt, 99), MAXC[i.cnt] - 1)
        if not need:
            _step(s, i)
            continue
        pos = k
        if hoist and i.kind == "mfma":
            j = k - 1
            cntd = {"vm": 0, "lgkm": 0}
            ok = True
            while j >= 0 and b[j].kind in ("valu", "trans", "ds", "vmem", "salu", "wait", "need") and k - j <= 5:
                if b[j].mn == "s_barrier":
                    ok = False
                    break
                if b[j].cnt:
                    cntd[b[j].cnt] += 1
                j -= 1
            if ok and j >= 0 and b[j].kind == "mfma" and all(need[c] - cntd[c] >= 0 for c in need):
                need = {c: need[c] - cntd[c] for c in need}
                pos = j + 1
        parts = {c: min(v, MAXC[c]) for c, v in need.items()}
        for p in (pos, pos - 1):
            if 0 <= p < len(b) and b[p].kind == "wait":
                o = b[p]
                if o.vm is not None:
                    parts["vm"] = min(parts.get("vm", 99), o.vm)
                if o.lgkm is not None:
                    parts["lgkm"] = min(parts.get("lgkm", 99), o.lgkm)
                del b[p]
                pos = p
                break
        t = "s_waitcnt" + (" vmcnt(%d)" % parts["vm"] if "vm" in parts else "") + (
            " lgkmcnt(%d)" % parts["lgkm"] if "lgkm" in parts else "")
        b.insert(pos, Ins(t))
        return True
    return False


def insert_waits(asm, hoist=True):
    bl, succ = _blocks(asm.ins)
    for cap in ([], ["lgkm", "vm"]):
        CAP[:] = cap
        changed = True
        while changed:
            changed = False
            for k in range(len(bl)):
                st = _flow(bl, succ)
                if st[k] is None:
                    continue
                selfloop = k in succ[k]
                while _fix_block(bl[k], st[k], hoist):
                    changed = True
                    if selfloop:
                        st = _flow(bl, succ)
    asm.ins = [i for b in bl for i in b]


def _need_states(p, c):
    n = 0
    pv = p.kind in ("valu", "trans")
    cv = c.kind in ("valu", "trans")
    pw = set(p.w)
    if pv:
        vw = {x for x in pw if x[0] in "va" and x != "vcc"}
        sw = {x for x in pw if x[0] == "s" or x == "vcc"}
        if c.kind == "mfma" and vw & set(c.r):
            n = max(n, 2)
        if cv and c.mn.startswith("v_permlane") and vw & set(c.r):
            n = max(n, 2)
        if cv and getattr(c, "dpp", False) and vw & set(c.r):
            n = max(n, 2)
        if cv and (c.mn.startswith("v_readfirstlane") or c.mn.startswith("v_readlane")) and vw & set(c.r):
            n = max(n, 1)
        if cv and sw & set(c.r):
            n = max(n, 4 if c.mn.startswith("v_readlane") or c.mn.startswith("v_writelane") else 2)
        if c.kind == "vmem" and sw & set(c.r):
            n = max(n, 5)
        if c.kind in ("salu", "branch", "smem") and sw & set(c.r):
            n = max(n, 1)
        if c.kind == "branch" and "vcc" in sw and "vcc" in c.r:
            n = max(n, 5)
        if p.kind == "trans" and c.kind == "valu" and vw & set(c.r):
            n = max(n, 1)
        if p.mn.startswith("v_dot") and c.mn != p.mn and vw & (set(c.r) | set(c.w)):
            n = max(n, 3)
    if p.kind == "mfma":
        full = 8 if p.passes == 4 else 12
        part = 6 if p.passes == 4 else 10
        war = 3 if p.passes == 4 else 7
        if c.kind == "mfma":
            if pw & set(c.ab):
                n = max(n, full)
            if pw & set(c.c) and (p.w != c.c or p.passes != c.passes):
                n = max(n, part)
            if pw & set(c.w) and p.w != c.c:
                n = max(n, part)
        elif cv:
            if pw & (set(c.r) | set(c.w)):
                n = max(n, full)
            if set(p.c) & set(c.w):
                n = max(n, war)
        elif c.kind in ("ds", "vmem"):
            if pw & (set(c.r) | set(c.aw)):
                n = max(n, full)
            if set(p.c) & set(c.aw):
                n = max(n, war)
    if p.kind == "salu" and "m0" in pw and getattr(c, "dma", False):
        n = max(n, 1)
    if p.kind == "salu" and "m0" in pw and cv and "m0" in c.r:
        n = max(n, 1)
    sd = getattr(p, "stdata", None)
    if sd and set(sd) & (set(c.w) | set(c.aw)):
        n = max(n, 2)
    return n


def check_hazards(asm, fix=True):
    added = 0
    start = 0
    while True:
        ins = asm.ins
        succ, pred = cfg(ins)
        bad = None
        for k in range(start, len(ins)):
            c = ins[k]
            if c.kind in ("label", "dir", "need", "wait", "end"):
                continue
            stack = [(p, 0) for p in pred[k]]
            seen = {}
            short = 0
            while stack:
                j, d = stack.pop()
                if d >= 12 or seen.get(j, 99) <= d:
                    continue
                seen[j] = d
                p = ins[j]
                if p.kind not in ("label", "dir", "need", "wait", "branch"):
                    n = _need_states(p, c)
                    if n > d and n - d > short:
                        short = n - d
                        who = p
                for q in pred[j]:
                    stack.append((q, d + p.states()))
            if short:
                bad = (k, short, who)
                break
        if not bad:
            return added
        k, short, who = bad
        if not fix:
            raise RuntimeError("hazard: %s -> %s needs %d more" % (who.text, ins[k].text, short))
        ins.insert(k, Ins("s_nop %d ; hz: %s" % (short - 1, who.text.split(";")[0][:60])))
        added += 1
        start = k


COST = {"s": 0, "d": 1, "v": 1, "t": 2, "m": 2}


class Item:
    def __init__(self, ins, main, lo, hi, after=(), dist=0):
        self.ins = ins
        self.lo, self.hi = lo, hi
        self.after = [a for a in after if a is not None]
        self.dist = dist
        self.gap = None
        cls = {"salu": "s", "wait": "s", "need": "s", "branch": "s", "label": "s", "ds": "d", "valu": "v", "trans": "t",
               "vmem": "m", "smem": "s"}
        self.cls = cls[main.kind]
        self.ns = sum(1 for i in ins if cls[i.kind] == "s" and i.kind not in ("need", "label"))
        self.cost = sum(COST[cls[i.kind]] for i in ins)
        self.lds = sum((1.0 if "b128" in i.mn else 0.5) for i in ins if i.kind == "ds")


class Stream:
    def __init__(self, lds_burst=3.0):
        self.m = []
        self.items = []
        self.burst = lds_burst

    def mfma(self, text):
        self.m.append(Ins(text))
        return len(self.m) - 1

    def put(self, text, lo, hi=None, after=(), dist=0, tok_w=(), tok_r=(), pre=None, post=None):
        if hi is None:
            hi = lo
        main = Ins(text, tok_w, tok_r)
        ins = ([Ins(t) for t in pre.split("\n")] if pre else []) + [main] + ([Ins(t) for t in post.split("\n")] if post else [])
        it = Item(ins, main, lo, hi, after if isinstance(after, (list, tuple)) else [after], dist)
        self.items.append(it)
        return it

    def _plan(self, bias, lone):
        n = len(self.m)
        for it in self.items:
            it.gap = None
        gaps = {g: [] for g in range(-1, n)}
        order = {id(it): k for k, it in enumerate(self.items)}
        todo = sorted(self.items, key=lambda it: (it.hi, order[id(it)]))
        over = 0
        bucket = self.burst
        for g in range(-1, n):
            cap, scal = 2, 1
            bucket = min(self.burst, bucket + 1.0)
            while True:
                ready = []
                for it in todo:
                    if it.lo > g or not all(a.gap is not None and (a.gap + it.dist <= g or g == n - 1) for a in it.after):
                        continue
                    ready.append(it)
                pick = next((it for it in ready if it.hi <= g or g == n - 1), None)
                if pick is None and g >= 0:
                    fit = []
                    for it in ready:
                        c = it.cost + max(0, it.ns - scal)
                        dep_same = it.cls in "dm" and any(a.gap == g and a.cls in "vt" for a in it.after)
                        if c <= cap and not dep_same and it.lds <= bucket:
                            fit.append((it.hi + bias.get(it.cls, 0), c, it))
                    fit.sort(key=lambda x: x[0])
                    free = [x for x in fit if x[1] == 0]
                    if free:
                        pick = free[0][2]
                    elif fit:
                        pick = fit[0][2]
                        if cap == 2 and fit[0][1] == 1:
                            two = [x for x in fit if x[1] == 2]
                            mates = [x for x in fit[1:] if x[1] == 1 and x[2].lds + pick.lds <= bucket]
                            if two and not mates and pick.hi - g > lone:
                                pick = two[0][2]
                if not pick:
                    break
                it = pick
                it.gap = g
                gaps[g].append(it)
                todo.remove(it)
                cap -= it.cost + max(0, it.ns - scal)
                scal = max(0, scal - it.ns)
                bucket -= it.lds
            if cap < 0 and 0 <= g < n - 1:
                over += -cap
            if bucket < 0:
                over += -bucket
        assert not todo, [it.ins[-1].text for it in todo]
        self.tail = sum(it.cost for it in gaps[n - 1])
        return over + max(0, self.tail - 2), gaps

    def emit(self, asm, search=False):
        n = len(self.m)
        best = None
        opts = [({}, 99)]
        if search:
            opts = [({"d": d, "v": v, "t": t}, lone) for d in (0, 6, 12, 20) for v in (0, 6, -6) for t in (0, -8, -16)
                    for lone in (1, 3)]
        for bias, lone in opts:
            over, _ = self._plan(bias, lone)
            if best is None or over < best[0]:
                best = (over, bias, lone)
        over, gaps = self._plan(best[1], best[2])
        rank = {"s": 0, "m": 1, "d": 1, "v": 2, "t": 2}
        for g in range(-1, n):
            if g >= 0:
                asm.add(self.m[g])
            its = gaps[g]
            done, out = set(), []
            pend = sorted(its, key=lambda it: (rank[it.cls], its.index(it)))
            while pend:
                for it in pend:
                    if all(a.gap != g or id(a) in done for a in it.after):
                        out.append(it)
                        done.add(id(it))
                        pend.remove(it)
                        break
                else:
                    raise RuntimeError("cyclic order in gap")
            for it in out:
                for i in it.ins:
                    asm.add(i)
        return over


_NO_SCC = ("s_mov_b32", "s_mov_b64", "s_cselect_b32", "s_cselect_b64", "s_mul_i32", "s_mul_hi_u32", "s_nop", "s_barrier",
           "s_sleep", "s_setprio", "s_getreg_b32", "s_movk_i32", "s_getpc_b64")


def check_scc(asm):
    ins = asm.ins
    succ, pred = cfg(ins)
    for k, c in enumerate(ins):
        if not (c.mn.startswith("s_cselect") or c.mn.startswith("s_cbranch_scc") or c.mn == "s_addc_u32"):
            continue
        stack, seen = list(pred[k]), set()
        while stack:
            j = stack.pop()
            if j in seen:
                continue
            seen.add(j)
            p = ins[j]
            if p.kind == "salu" and p.mn not in _NO_SCC:
                ok = p.mn.startswith("s_cmp") or (c.mn == "s_addc_u32" and p.mn == "s_add_u32") or ";scc" in p.text
                if not ok:
                    raise RuntimeError("SCC clobber: %s before %s" % (p.text, c.text))
                continue
            stack += pred[j]
```

```python
import sys
from asmlib import *

NAME = "parallel_sum__compressed_kv_cla__dense_activation_silu__prompt"
KN = NAME + "_kernel"

WS_CNT = 0
WS_XN = 0x10000
WS_KV = 0x400000
WS_A = 0x2400000
WS_EX = 0x3C00000
WS_DIAG = 0xF000000
WS_SIZE = 0x10000000
A_RB = 184 * 1024
C_KV, C_H, C_CTX, C_EX = 0, 32, 64, 96
OOB = 0x20000000

MF = "v_mfma_f32_16x16x32_bf16"
S_WG, S_W, S_H, S_I, S_J, S_HL = "s2", "s3", "s4", "s5", "s6", "s7"
SRD_WS = 8
PTR = 64
OPT = {}
DIAG = False
SLOW = []


def NTT():
    return " nt" if OPT.get("ntt", 0) else ""


def NTD():
    return " nt" if OPT.get("ntd", 0) else ""


def NT1():
    return " nt" if OPT.get("nt1", 0) else ""


def S(n):
    return f"s[{n}:{n + 3}]"


def vr(kind, n, w=4):
    return f"{kind}[{n}:{n + w - 1}]"


def srd(a, n, ptr, nbytes, add=None):
    if add is None:
        a(f"s_mov_b32 s{n}, s{PTR + 2 * ptr}")
        a(f"s_and_b32 s{n + 1}, s{PTR + 2 * ptr + 1}, 0xffff")
    else:
        a(f"s_add_u32 s{n}, s{PTR + 2 * ptr}, {add}")
        a(f"s_addc_u32 s{n + 1}, s{PTR + 2 * ptr + 1}, 0")
        a(f"s_and_b32 s{n + 1}, s{n + 1}, 0xffff")
    a(f"s_mov_b32 s{n + 2}, {nbytes}")
    a(f"s_mov_b32 s{n + 3}, 0x20000")


def stamp(a, k):
    if not DIAG:
        return
    a("s_memrealtime s[98:99]\ns_memtime s[100:101]\ns_waitcnt lgkmcnt(0)")
    a(f"v_writelane_b32 v15, s98, {k}\nv_writelane_b32 v15, s100, {32 + k}")


def sstamp(st, k, g, what):
    if DIAG and OPT.get("diag2") == what:
        st.put(f"v_writelane_b32 v15, s100, {32 + k}", g, g,
               pre=f"s_memrealtime s[98:99]\ns_memtime s[100:101]\ns_waitcnt lgkmcnt(0)\nv_writelane_b32 v15, s98, {k}")


def stamp_dump(a):
    if not DIAG:
        return
    a("s_waitcnt vmcnt(0)")
    stamp(a, 31)
    a(f"s_lshl_b32 s98, {S_WG}, 2\ns_add_u32 s98, s98, {S_W}\ns_lshl_b32 s98, s98, 8")
    a(f"s_add_u32 s98, s98, {WS_DIAG}")
    a("v_lshrrev_b32 v14, 2, v1")
    a(f"buffer_store_dword v15, v14, {S(SRD_WS)}, s98 offen")


def rowblocks(a, dst, mul, add):
    for q in range(4):
        a(f"s_sub_u32 s28, 15, {S_I}" if q < 2 else f"s_mov_b32 s28, {S_I}")
        a("s_lshl_b32 s28, s28, 3")
        if q & 1:
            a("s_add_u32 s28, s28, 7")
            a(f"s_sub_u32 s28, s28, {S_W}")
        else:
            a(f"s_add_u32 s28, s28, {S_W}")
        a(f"s_mul_i32 s28, s28, {mul}")
        a(f"s_add_u32 s{dst + q}, s28, {add}")


def poll_text(load, reg, want, tag):
    b = Asm()
    b(f"L_sl_{tag}:")
    b("s_mov_b32 s30, 40000")
    b(f"L_sl_{tag}_l:")
    b("s_sleep 2")
    b(load)
    b("s_sub_u32 s30, s30, 1")
    b(f"v_cmp_gt_u32 vcc, {want}, {reg}")
    b("s_cmp_eq_u32 s30, 0")
    b(f"s_cbranch_scc1 L_bk_{tag}")
    b(f"s_cbranch_vccnz L_sl_{tag}_l")
    b(f"s_branch L_bk_{tag}")
    SLOW.append(b)
    return f"v_cmp_gt_u32 vcc, {want}, {reg}", f"s_cbranch_vccnz L_sl_{tag}", f"L_bk_{tag}:"


def sig_off(a, dst, line):
    a(f"s_lshl_b32 {dst}, {line}, 7")
    a(f"s_cmp_eq_u32 {S_W}, 0")
    a(f"s_cselect_b32 {dst}, {dst}, {OOB}")


def sig_text(soff, srdn=SRD_WS):
    return f"buffer_atomic_add v13, v12, {S(srdn)}, {soff} offen sc1"


P1_W0 = 65536
P1_WM = 16896
P1_WS = 2 * P1_WM
P1_X = 133120
SRD_C, SRD_WK, SRD_WV, SRD_DBG = 12, 16, 20, 24
SRD_WQ, SRD_W1, SRD_XN = 52, 56, 60
P2_SLOT = [133120, 73984, 0, 25344, 105728]
P2_REG = ["v11", "v3", "v2", "v2", "v3"]
P2_OFF = [0, 0, 0, 25344, 31744]


def pair_base(m):
    return ("a", 80 + 8 * m) if m < 2 else ("v", 16 + 8 * (m - 2))


def p1_acc(vwave, j, i):
    m, half = (8 * (i >> 1) + j, i & 1) if vwave else (4 * i + (j >> 1), j & 1)
    k, b = pair_base(m)
    return k, b + 4 * half


def entry(a):
    a(f".globl {KN}\n.p2align 8\n.type {KN},@function\n{KN}:")
    if DIAG:
        a("s_memrealtime s[98:99]\ns_memtime s[100:101]")
    a("s_cmp_ge_u32 s2, 256")
    a("s_cbranch_scc1 L_end")
    a(f"s_load_dwordx16 s[{PTR}:{PTR + 15}], s[0:1], 0")
    a(f"s_load_dwordx8 s[{PTR + 16}:{PTR + 23}], s[0:1], 64")
    a("s_getpc_b64 s[96:97]")
    a("L_pc:")
    a("v_lshrrev_b32 v1, 6, v0")
    a("s_and_b32 s28, s2, 7")
    a(f"s_lshr_b32 {S_J}, s28, 1")
    a("v_readfirstlane_b32 s3, v1")
    a("s_and_b32 s28, s28, 1")
    a("s_lshr_b32 s29, s2, 3")
    a(f"s_and_b32 {S_HL}, s29, 7")
    a("s_lshr_b32 s29, s29, 3")
    a(f"s_lshl_b32 {S_H}, {S_J}, 3")
    a(f"s_add_u32 {S_H}, {S_H}, {S_HL}")
    a("s_and_b32 s30, s29, 1")
    a("s_xor_b32 s30, s30, s28")
    a(f"s_lshl_b32 {S_I}, s29, 1")
    a(f"s_add_u32 {S_I}, {S_I}, s30")


def zero16(a, kind, r):
    a(f"v_mfma_f32_32x32x16_bf16 {vr(kind, r, 16)}, a[0:3], a[0:3], 0")


def phase1_start(a):
    a("v_bfe_u32 v7, v0, 3, 3")
    a("v_and_b32 v8, 6, v7")
    a("v_and_b32 v11, 7, v0")
    a("v_xor_b32 v8, v8, v11")
    a("v_lshlrev_b32 v8, 4, v8")
    a("v_lshl_add_u32 v5, v7, 10, v8")
    a("v_mul_u32_u24 v9, 0x500, v11")
    a("v_lshl_add_u32 v9, v7, 4, v9")
    a(f"s_lshl_b32 s32, {S_I}, 18")
    a(f"s_lshl_b32 s28, {S_W}, 16")
    a("s_add_u32 s32, s32, s28")
    a(f"s_lshl_b32 s34, {S_W}, 13")
    a(f"s_mul_i32 s29, {S_WG}, 10240")
    a(f"s_lshl_b32 s28, {S_W}, 7")
    a("s_add_u32 s29, s29, s28")
    a(f"s_lshl_b32 s28, {S_W}, 10")
    a(f"s_add_u32 s30, s28, {P1_X}")
    for n, size in ((SRD_DBG, 2621440), (SRD_C, 2097152)):
        a(f"s_mov_b32 s{n + 2}, {size}\ns_mov_b32 s{n + 3}, 0x20000")
    a("s_waitcnt lgkmcnt(0)")
    for n, ptr in ((SRD_DBG, 0), (SRD_C, 1)):
        a(f"s_mov_b32 s{n}, s{PTR + 2 * ptr}\ns_and_b32 s{n + 1}, s{PTR + 2 * ptr + 1}, 0xffff")
    for k in range(3):
        if k == 2:
            a(f"s_cmp_ge_u32 {S_W}, 2")
            a("s_cbranch_scc1 L_x2")
        a(f"s_add_u32 m0, s30, {k * 4096}")
        a(f"s_add_u32 s28, s29, {k * 512}")
        a(f"buffer_load_dwordx4 v9, {S(SRD_DBG)}, s28 offen{NT1()} lds", tok_w=["X"])
    a("L_x2:")

    def cdma(slot, t):
        for pp in range(8):
            a(f"s_add_u32 m0, s34, {slot * 32768 + pp * 1024}")
            a(f"s_add_u32 s28, s32, {pp * 8192 + t * 128}")
            a(f"buffer_load_dwordx4 v5, {S(SRD_C)}, s28 offen{NT1()} lds", tok_w=["C%d" % t])

    cdma(0, 0)
    if DIAG:
        a("v_mov_b32 v15, 0\nv_writelane_b32 v15, s98, 0\nv_writelane_b32 v15, s100, 32")
    stamp(a, 1)
    a("v_lshlrev_b32 v14, 4, v11")
    a("v_lshl_add_u32 v14, v7, 8, v14")
    if OPT.get("codepf", 1):
        a("s_lshr_b32 s28, s2, 3")
        a("s_lshl_b32 s28, s28, 2")
        a(f"s_add_u32 s28, s28, {S_W}")
        a("s_mul_i32 s28, s28, 640")
        a("v_lshlrev_b32 v7, 7, v11")
        a("v_add_u32 v7, s28, v7")
        a("v_min_u32 v7, L_end-L_pc, v7")
        a("global_load_dword v10, v7, s[96:97]")
    a("v_bfe_u32 v7, v0, 4, 2")
    a("v_and_b32 v8, 15, v0")
    a("v_lshlrev_b32 v11, 4, v8")
    a("v_lshl_add_u32 v6, v7, 17, v11")
    a(f"s_and_b32 s28, {S_W}, 1")
    a("s_lshl_b32 s28, s28, 3")
    a(f"s_lshr_b32 s29, {S_W}, 1")
    a("s_lshl_b32 s29, s29, 2")
    a("s_add_u32 s28, s28, s29")
    a("s_lshl_b32 s33, s28, 13")
    a(f"s_lshl_b32 s28, {S_H}, 8")
    a("s_add_u32 s33, s33, s28")
    a(f"s_mul_i32 s42, {S_W}, {4 * 1056}")
    a(f"s_add_u32 s35, s42, {P1_W0}")
    srd(a, SRD_WK, 3, 4194304)
    srd(a, SRD_WV, 4, 4194304)
    for k in range(4):
        a(f"v_accvgpr_write_b32 a{k}, 0")
    z = [("v", r) for r in range(80, 256, 16)] + [("a", 80)]
    for mat in range(2):
        for e in range(4):
            a(f"s_add_u32 m0, s35, {mat * P1_WM + e * 1056}")
            a(f"s_add_u32 s29, s33, {e * 8192}")
            a(f"buffer_load_dwordx4 v6, {S(SRD_WK + 4 * mat)}, s29 offen{NT1()} lds", tok_w=["W0"])
            zero16(a, *z.pop())
    while z:
        zero16(a, *z.pop())
    a("v_and_b32 v1, 63, v0")
    a("v_cmp_eq_u32 vcc, 0, v1")
    a("v_mov_b32 v13, 2.0")
    a("v_lshlrev_b32 v1, 4, v1")
    a("v_cndmask_b32 v12, v13, 0, vcc")
    a("v_mov_b32 v13, 1")
    a("v_and_b32 v11, 6, v8")
    a("v_xor_b32 v11, v11, v7")
    a("v_lshlrev_b32 v11, 4, v11")
    a("v_lshl_add_u32 v2, v8, 7, v11")
    a(f"s_and_b32 s28, {S_W}, 1")
    a("s_lshl_b32 s28, s28, 14")
    a("v_add_u32 v2, s28, v2")
    a("v_xor_b32 v3, 64, v2")
    a("v_bfe_u32 v8, v0, 2, 2")
    a("v_and_b32 v11, 1, v7")
    a("v_lshl_add_u32 v8, v11, 2, v8")
    a("v_mul_u32_u24 v8, 0x420, v8")
    a("v_lshrrev_b32 v11, 1, v7")
    a("v_lshl_add_u32 v8, v11, 8, v8")
    a("v_and_b32 v11, 3, v0")
    a("v_lshl_add_u32 v8, v11, 3, v8")
    a(f"s_lshr_b32 s28, {S_W}, 1")
    a(f"s_mul_i32 s28, s28, {P1_WM}")
    a(f"s_add_u32 s31, s28, {P1_W0}")
    a("v_add_u32 v4, s31, v8")
    a(f"s_add_u32 s91, s31, {P1_WS}")
    a("s_mov_b32 s40, s33")
    a(f"s_mov_b32 s36, {-P1_WS & 0xffffffff}")
    a(f"s_mov_b32 s37, {P1_WS}")
    a(f"s_cmp_eq_u32 {S_W}, 0")
    a("s_cselect_b32 s39, 0, -1")
    srd(a, SRD_WS, 11, WS_SIZE)
    srd(a, SRD_XN, 11, 2621440, add=WS_XN)
    ln_part(a, cdma)


def phase1_late(a):
    srd(a, SRD_WQ, 2, 5242880)
    srd(a, SRD_W1, 7, 2211840)
    a(f"s_and_b32 s28, {S_W}, 1")
    a("s_lshl_b32 s28, s28, 1")
    a(f"s_lshr_b32 s29, {S_W}, 1")
    a("s_lshl_b32 s29, s29, 3")
    a("s_add_u32 s28, s28, s29")
    a("s_mul_i32 s41, s28, 3456")
    a(f"s_mul_i32 s28, {S_J}, 7")
    a(f"s_add_u32 s28, s28, {S_HL}")
    a("s_min_u32 s92, s28, 26")
    a("s_lshl_b32 s28, s92, 7")
    a("s_add_u32 s41, s41, s28")
    a(f"s_mul_i32 s43, {S_W}, {2 * 1056}")
    a("s_add_u32 s43, s43, 16896")
    rowblocks(a, 44, 20480, 0)
    a(f"s_mul_i32 s29, {S_J}, {46 * 1024}")
    a(f"s_add_u32 s29, s29, {WS_A}")
    rowblocks(a, 48, A_RB, "s29")
    a(f"s_lshl_b32 s28, {S_H}, 4")
    a(f"s_lshl_b32 s29, {S_I}, 1")
    a("s_add_u32 s28, s28, s29")
    a(f"s_and_b32 s29, {S_W}, 1")
    a("s_add_u32 s28, s28, s29")
    a("s_lshl_b32 s28, s28, 1")
    a(f"s_lshr_b32 s29, {S_W}, 1")
    a("s_add_u32 s28, s28, s29")
    a("s_lshl_b32 s28, s28, 15")
    a(f"s_add_u32 s93, s28, {WS_KV}")
    a(f"s_cmp_eq_u32 {S_J}, 3")
    a("s_cselect_b32 s29, 6, 7")
    a(f"s_cmp_lt_u32 {S_HL}, s29")
    a(f"s_cselect_b32 s{SRD_W1 + 2}, 2211840, 0")


def ln_part(a, cdma):
    a("v_and_b32 v16, 63, v0")
    a(f"s_lshl_b32 s94, {S_WG}, 2")
    a(f"s_add_u32 s94, s94, {S_W}")
    a("s_lshl_b32 s28, s94, 11")
    a("s_add_u32 s28, s28, 256")
    a("v_lshlrev_b32 v17, 10, v16")
    a("v_add_u32 v17, s28, v17")
    a(f"v_mov_b32 v8, s{PTR + 2}\nv_mov_b32 v9, s{PTR + 3}\nv_mov_b32 v7, 0x80")
    for lo, ptr, per, first, step in ((2, 3, 512, 64 * 8192, 64 * 8192), (6, 4, 512, 64 * 8192, 64 * 8192),
                                      (10, 2, 1024, 0, 128 * 8192), (18, 7, 432, 0, 128 * 3456)):
        a(f"s_mul_i32 s28, s94, {per}")
        if lo == 18:
            a("s_and_b32 s28, s28, 0xffffff80")
            a(f"s_min_u32 s28, s28, {128 * 3456 - 512}")
        a(f"s_add_u32 s28, s28, {(first - lo * 128) & 0xffffffff}")
        a("v_min_u32 v18, 21, v16")
        a("v_lshlrev_b32 v18, 7, v18")
        a("v_add_u32 v18, s28, v18")
        a(f"v_cmp_le_u32 vcc, {lo}, v16")
        a(f"v_mov_b32 v22, s{PTR + 2 * ptr}\nv_mov_b32 v23, s{PTR + 2 * ptr + 1}\nv_mov_b32 v24, {step}")
        a("v_cndmask_b32 v17, v17, v18, vcc")
        a("v_cndmask_b32 v8, v8, v22, vcc\nv_cndmask_b32 v9, v9, v23, vcc\nv_cndmask_b32 v7, v7, v24, vcc")
    a("v_add_co_u32 v8, vcc, v8, v17")
    a("v_addc_co_u32 v9, vcc, 0, v9, vcc")
    a(f"s_mul_i32 s28, {S_W}, 3")
    a("s_min_u32 s28, s28, 7")
    a("s_lshl_b32 s88, s28, 11")
    a("s_lshl_b32 s28, s28, 10")
    a(f"v_add_u32 v11, {P1_X}, v1")
    a("v_add_u32 v64, s28, v11")
    a.need("X")
    a("s_barrier")
    stamp(a, 2)
    for s in range(10):
        a(f"ds_read_b128 {vr('v', 16 + 4 * s)}, v11 offset:{s * 1024}")
    for s in range(3):
        a(f"ds_read_b128 {vr('v', 68 + 4 * s)}, v64 offset:{s * 1024}")
    a("s_mov_b32 s28, 0x3f803f80")
    a("v_mov_b32 v60, 0\nv_mov_b32 v61, 0\nv_mov_b32 v62, 0\nv_mov_b32 v63, 0")
    for k in range(40):
        a(f"v_dot2_f32_bf16 v{60 + (k & 1)}, v{16 + k}, s28, v{60 + (k & 1)}")
        a(f"v_dot2_f32_bf16 v{62 + (k & 1)}, v{16 + k}, v{16 + k}, v{62 + (k & 1)}")
    a("v_add_f32 v60, v60, v61")
    a("v_add_f32 v62, v62, v63")
    a("v_add_f32_dpp v60, v60, v60 row_ror:8 row_mask:0xf bank_mask:0xf")
    a("v_add_f32_dpp v62, v62, v62 row_ror:8 row_mask:0xf bank_mask:0xf")
    for sw in ("v_permlane16_swap_b32", "v_permlane32_swap_b32"):
        a("v_mov_b32 v61, v60\nv_mov_b32 v63, v62")
        a(f"{sw} v60, v61\n{sw} v62, v63")
        a("v_add_f32 v60, v60, v61\nv_add_f32 v62, v62, v63")
    a("s_mov_b32 s28, 0x3acccccd")
    a("v_mul_f32 v60, s28, v60")
    a("v_mul_f32 v62, s28, v62")
    a("v_fma_f32 v62, -v60, v60, v62")
    a("v_max_f32 v62, 0, v62")
    a("v_cvt_pk_bf16_f32 v61, v60, v62")
    a("v_lshlrev_b32 v60, 16, v61")
    a("v_and_b32 v62, 0xffff0000, v61")
    a("v_add_f32 v62, 0x3727c5ac, v62")
    a("v_cvt_pk_bf16_f32 v62, v62, v62")
    a("v_and_b32 v62, 0xffff0000, v62")
    a("v_sqrt_f32 v62, v62")
    a("v_cvt_pk_bf16_f32 v62, v62, v62")
    a("v_and_b32 v62, 0xffff0000, v62")
    a("v_rcp_f32 v62, v62")
    a(f"s_lshr_b32 s28, {S_WG}, 1")
    a("s_mul_i32 s28, s28, 20480")
    a(f"s_and_b32 s29, {S_WG}, 1")
    a("s_lshl_b32 s29, s29, 7")
    a("s_add_u32 s28, s28, s29")
    a("s_add_u32 s28, s28, s88")
    for s in range(3):
        for k in range(4):
            r = 68 + 4 * s + k
            a(f"v_lshlrev_b32 v64, 16, v{r}")
            a(f"v_and_b32 v65, 0xffff0000, v{r}")
            a("v_sub_f32 v64, v64, v60")
            a("v_sub_f32 v65, v65, v60")
            a("v_cvt_pk_bf16_f32 v64, v64, v65")
            a("v_and_b32 v65, 0xffff0000, v64")
            a("v_lshlrev_b32 v64, 16, v64")
            a("v_mul_f32 v64, v64, v62")
            a("v_mul_f32 v65, v65, v62")
            a(f"v_cvt_pk_bf16_f32 v{68 + 4 * s + k}, v64, v65")
        a(f"buffer_store_dwordx4 {vr('v', 68 + 4 * s)}, v14, {S(SRD_XN)}, s28 offen offset:{(s & 1) * 2048} sc1")
        if s == 1:
            a("s_add_u32 s28, s28, 4096")
    for r in (16, 32, 48, 64):
        zero16(a, "v", r)
    sig_off(a, "s29", S_WG)
    a(f"buffer_store_dword v255, v12, {S(SRD_WS)}, s29 offen sc1")
    cdma(1, 1)
    if OPT.get("touch", 1):
        a("s_mov_b64 exec, 0x3ff")
        for k in range(2):
            a("global_load_dword v10, v[8:9], off")
            a("v_add_co_u32 v8, vcc, v8, v7")
            a("v_addc_co_u32 v9, vcc, 0, v9, vcc")
        a("s_mov_b64 exec, -1")
    a(f"s_add_u32 s33, s33, {64 * 8192}")
    a(f"s_add_u32 s35, s35, {P1_WS}")
    a("s_add_u32 s32, s32, 256")
    a(f"s_and_b32 s95, {S_WG}, 63")
    a("s_lshl_b32 s95, s95, 2")
    a("s_mov_b32 s38, 0")
    srd(a, SRD_DBG, 10, 256)
    stamp(a, 3)
    a.need("C0", "W0")
    a("s_barrier")
    stamp(a, 4)
    for ks in range(2):
        for hf in range(2):
            a(f"ds_read_b64_tr_b16 {vr('a', 64 + ks * 4 + hf * 2, 2)}, v4 offset:{hf * 8448 + ks * 512}")
    for i in range(6):
        for ks in range(2):
            a(f"ds_read_b128 {vr('a', i * 8 + ks * 4)}, v{2 + ks} offset:{i * 2048}")


def p2_wread(R, seq):
    t, jb = seq[R]
    sl = t % 5
    out = []
    for ks in range(2):
        for hf in range(2):
            off = (16896 + jb * 32 + hf * 128 + ks * 512) if jb < 4 else ((jb - 4) * 32 + hf * 8448 + ks * 512)
            out.append(f"ds_read_b64_tr_b16 {vr('a', (R % 3) * 8 + ks * 4 + hf * 2, 2)}, {P2_REG[sl]} offset:{P2_OFF[sl] + off}")
    return out


def p2_dma(st, t, lo, hi, prev):
    slot = P2_SLOT[t % 5]
    for k, (mat, e) in enumerate([(0, 0), (0, 1), (0, 2), (0, 3), (1, 0), (1, 1)]):
        g = lo + 2 + (k * (hi - lo - 2)) // 6
        m0 = st.put(f"s_add_u32 m0, s{42 + mat}, {slot + e * 1056}", g - 2, g - 1, after=prev)
        so = st.put(f"s_add_u32 s28, s{40 + mat}, {(64 * t + e) * (3456 if mat else 8192)}", g - 2, g - 1, after=prev)
        prev = st.put(f"buffer_load_dwordx4 v{6 - mat}, {S(SRD_WQ + 4 * mat)}, s28 offen{NTD()} lds", g, g + 3,
                      after=[m0, so], dist=1, tok_w=["QW%d" % t])
    return prev


def p2_xload(t, q, ks):
    return (f"buffer_load_dwordx4 {vr('a', 96 + (t & 3) * 32 + q * 8 + ks * 4)}, v1, {S(SRD_XN)}, s{44 + q} offen "
            f"offset:{(t & 1) * 2048 + ks * 1024} sc1")


P2_SEQ = [(t, jb) for t in range(7) for jb in range(12)] + [(t, jb) for t in (7, 8, 9) for jb in range(4)] + \
         [(t, jb) for t in (7, 8, 9) for jb in range(4, 12)]


EARLY = [8, 16, 24, 4, 12, 20, 28]


def phase1_iter(a, vwave, tag, mode):
    st = Stream()
    done = {}
    for j in range(8):
        for i in range(8):
            k, r = p1_acc(vwave, j, i)
            for ks in range(2):
                w = vr("a", 64 + (j & 1) * 8 + ks * 4)
                c = vr("a", i * 8 + ks * 4)
                x, y = (c, w) if vwave else (w, c)
                n = st.mfma(f"{MF} {vr(k, r)}, {x}, {y}, {vr(k, r)}")
            done[(8 * (i >> 1) + j) if vwave else (4 * i + (j >> 1))] = n
    top = [st.put(f"ds_read_b128 {vr('a', i * 8 + ks * 4)}, v{2 + ks} offset:{i * 2048}", 0, 3)
           for i in (6, 7) for ks in range(2)]
    lastw = None
    for j in range(1, 8):
        for ks in range(2):
            for hf in range(2):
                lastw = st.put(f"ds_read_b64_tr_b16 {vr('a', 64 + (j & 1) * 8 + ks * 4 + hf * 2, 2)}, v4 "
                               f"offset:{j * 32 + hf * 8448 + ks * 512}", 16 * (j - 1) + (4 if j == 1 else 1), 16 * (j - 1) + 8)
    if mode != 7:
        if mode != 6:
            barA = st.put("s_waitcnt lgkmcnt(0)", 12, 12)
            barA = st.put("s_barrier", 13, 13, after=barA)
        tog = [st.put(f"v_xor_b32 v{2 + ks}, 0x8000, v{2 + ks}", 20, 100, after=top) for ks in range(2)]
        wt = st.put("v_add_u32 v4, s37, v4", 106, 109, after=lastw)
        st.put("s_sub_u32 s37, 0, s37", 110, 120, after=wt)
        prev, g = None, 3
        for mat in range(2):
            for e in range(4):
                m0 = st.put(f"s_add_u32 m0, s35, {mat * P1_WM + e * 1056}", g - 1, g - 1, after=prev)
                so = st.put(f"s_add_u32 s28, s33, {e * 8192}", g, g, after=prev)
                prev = st.put(f"buffer_load_dwordx4 v6, {S(SRD_WK + 4 * mat)}, s28 offen{NT1()} lds", g + 1, g + 2,
                              after=[m0, so], dist=1, tok_w=["W"])
                g += 5
        st.put(f"s_add_u32 s33, s33, {64 * 8192}", g, g + 4, after=prev)
        u = st.put("s_add_u32 s35, s35, s36", g, g + 4, after=prev)
        st.put("s_sub_u32 s36, 0, s36", g + 1, g + 6, after=u)
        if mode == 0 and OPT.get("touch", 1):
            gt = 76 if vwave else 45
            tl = st.put("global_load_dword v10, v[8:9], off", gt, gt + 1, after=prev)
            p = st.put("s_cselect_b64 s[88:89], 3, 0", gt + 1, gt + 3, pre="s_cmp_ge_u32 s38, 3")
            p = st.put("v_cndmask_b32 v7, v7, 0, s[88:89]", gt + 2, gt + 5, after=[p, tl], dist=1)
            p = st.put("v_add_co_u32 v8, vcc, v8, v7", gt + 3, gt + 8, after=p, dist=1)
            st.put("v_addc_co_u32 v9, vcc, 0, v9, vcc", gt + 5, gt + 11, after=p, dist=2)
        xl = None
        if mode == 5:
            pl = f"buffer_load_dword v11, v14, {S(SRD_DBG)}, 0 offen sc1"
            p = st.put("v_lshrrev_b32 v14, 2, v1", -1)
            pld = st.put(pl, 0, 1, after=p)
            late = Asm()
            phase1_late(late)
            txt = [i.text.replace("s28", "s0").replace("s29", "s1") for i in late.ins]
            lp, k = None, 0
            while k < len(txt):
                n = 2 if txt[k].startswith("s_cmp") else 1
                lp = st.put(txt[k + n - 1], 0, (k * 50) // len(txt) + 4, after=lp, pre=txt[k] if n == 2 else None)
                k += n
            cmp_, br, lab = poll_text(pl, "v11", 4, "s1" + tag)
            p = st.put(cmp_, 42, 42, after=pld)
            xl = [st.put(lab, 46, 46, after=p, pre=br), lp]
        if mode != 6:
            g = 48 if mode == 5 else 52
            for pp in range(8):
                m0 = st.put(f"s_add_u32 m0, s34, {pp * 1024}", g - 1, g - 1, after=[prev, barA])
                so = st.put(f"s_add_u32 s28, s32, {pp * 8192}", g, g, after=prev)
                prev = st.put(f"buffer_load_dwordx4 v5, {S(SRD_C)}, s28 offen{NT1()} lds", g + 1, g + 2, after=[m0, so], dist=1)
                if mode == 5:
                    xl = st.put(p2_xload(0, pp >> 1, pp & 1), max(g + 5, 56), max(g + 6, 58), after=xl)
                g += 8 if mode == 5 else 7
            if mode == 0:
                st.put("s_add_u32 s32, s32, 128", g, g + 3, after=prev)
                st.put("s_xor_b32 s34, s34, 0x8000", g, g + 3, after=prev)
        else:
            p = st.put("v_bfe_u32 v7, v0, 3, 1", 4, 16)
            p = st.put("v_bfe_u32 v8, v0, 4, 2", 4, 17, after=p)
            p = st.put("v_lshlrev_b32 v8, 2, v8", 4, 18, after=p)
            p = st.put("v_add_lshl_u32 v7, v7, v8, 2", 4, 19, after=p)
            p = st.put("v_mul_u32_u24 v7, 0xd80, v7", 4, 20, after=p)
            p = st.put("v_and_b32 v8, 7, v0", 4, 21, after=p)
            pat = st.put("v_lshl_add_u32 v5, v8, 4, v7", 4, 22, after=p)
            xl = p2_dma(st, 0, 44, 74, [prev, pat])
            g = 76
            for q in range(4):
                for ks in range(2):
                    xl = st.put(p2_xload(1, q, ks), g, g + 3, after=xl)
                    g += 4
                st.put(f"s_add_u32 s{44 + q}, s{44 + q}, 4096", g - 3, 126, after=xl)
        nb = st.put("", 110, 110, tok_r=["W"])
        nb = st.put("s_waitcnt lgkmcnt(0)", 110, 110, after=nb)
        barB = st.put("s_barrier", 111, 111, after=nb)
        if mode == 0:
            st.put(f"L_s1b_{tag}:", 112, 112, after=barB, pre=f"s_cmp_eq_u32 s38, s39\ns_cbranch_scc1 L_s1_{tag}")
            b = Asm()
            b(f"L_s1_{tag}:")
            b(sig_text("s95", SRD_DBG))
            b(f"s_branch L_s1b_{tag}")
            SLOW.append(b)
        for ks in range(2):
            for hf in range(2):
                st.put(f"ds_read_b64_tr_b16 {vr('a', 64 + ks * 4 + hf * 2, 2)}, v4 offset:{hf * 8448 + ks * 512}",
                       113, 120, after=[barB, wt])
        for i in range(6):
            for ks in range(2):
                st.put(f"ds_read_b128 {vr('a', i * 8 + ks * 4)}, v{2 + ks} offset:{i * 2048}", 113 + 2 * i,
                       min(127, 120 + 2 * i), after=[barB] + tog)
        if mode:
            return st.emit(a)
        st.put("s_add_u32 s38, s38, 1", 122, 124)
        st.put("s_cmp_lt_u32 s38, 5", 126, 126)
        a(".p2align 3")
        a(f"L_p1_{tag}:")
        over = st.emit(a)
        a(f"s_cbranch_scc1 L_p1_{tag}")
        return over
    ra = st.put("v_subrev_u32 v2, s91, v4", 8, 30, after=top)
    rb = st.put(f"v_add_u32 v3, {P2_SLOT[1]}, v2", 8, 32, after=ra)
    prev = p2_dma(st, 1, 2, 34, None)
    g = 36
    xl = prev
    for q in range(4):
        for ks in range(2):
            xl = st.put(p2_xload(2, q, ks), g, g + 4, after=xl)
            g += 10 if not OPT.get("eclus") else 6
    chk = None
    p = chk
    for m in range(2):
        for k in range(4):
            p = st.put(f"v_accvgpr_read_b32 v7, a{80 + 8 * m + 2 * k}", done[m] + 5, 60 + 24 * m + 4 * k, after=p)
            p = st.put(f"v_accvgpr_read_b32 v14, a{81 + 8 * m + 2 * k}", done[m] + 5, 61 + 24 * m + 4 * k, after=p)
            p = st.put(f"v_cvt_pk_bf16_f32 v{8 + k}, v7, v14", done[m] + 5, 62 + 24 * m + 4 * k, after=p)
        p = st.put(f"buffer_store_dwordx4 v[8:11], v1, {S(SRD_WS)}, s93 offen offset:{m * 1024} sc1", 0, 80 + 24 * m,
                   after=p, dist=1, tok_w=["KVS"])
        p = st.put("s_nop 0", 0, 81 + 24 * m, after=p, dist=1)
    rb = st.put(f"v_add_u32 v11, {P2_SLOT[0]}, v2", 0, 110, after=[p, ra])
    for m in range(2, 32):
        b = pair_base(m)[1]
        p = None
        for k in range(4):
            p = st.put(f"v_cvt_pk_bf16_f32 v{b + k}, v{b + 2 * k}, v{b + 2 * k + 1}", min(done[m] + 5, 127),
                       min(done[m] + 24, 127), after=p)
        if m in EARLY:
            g = (40 + 11 * EARLY.index(m)) if not OPT.get("eclus") else 96 + 3 * EARLY.index(m)
            st.put(f"buffer_store_dwordx4 {vr('v', b)}, v1, {S(SRD_WS)}, s1 offen sc1", g, max(g, done[m] + 26) + 4, after=p,
                   dist=1, pre=f"s_add_u32 s1, s93, {m * 1024}", tok_w=["KVS"])
    nb = st.put("", 108, 108, tok_r=["QW0"])
    bar = st.put("s_barrier", 109, 109, after=nb)
    for R in range(2):
        for k, t in enumerate(p2_wread(R, P2_SEQ)):
            st.put(t, 114 + 2 * R, 122 + 2 * R, after=[bar, rb])
    return st.emit(a, search=True)


Q_SCALE = 0x3e0293ee
V_S, V_P, V_NM, V_L, V_Q, V_ND, V_ONE, V_T = 16, 80, 112, 128, 144, 208, 216, 220
SRD_KV = 12


def a_o(n):
    return 96 + 4 * n if n < 8 else 160 + 4 * (n - 8)


def a_x(f):
    return 4 * f if f < 8 else 128 + 4 * (f - 8)


def a_y(f):
    return 32 + 4 * f


def _qmap():
    free = [("v", 20 + 8 * k) for k in range(30) if not 144 <= 20 + 8 * k < 208] + [("a", 24), ("a", 28)]
    m = {}
    for q in range(4):
        for jb in range(8):
            if jb in (2, 6):
                m[(jb, q)] = ("v", V_Q + (q * 4 + (jb >> 1)) * 4)
    for jb in range(8):
        for q in range(4):
            if (jb, q) not in m:
                m[(jb, q)] = free.pop(-1 if jb == 0 and q < 2 else 0)
    return m


QMAP = _qmap()
KV_FIRST = [(0, "K0"), (0x8000, "KV"), (0x4000, "KV"), (0xc000, "KV"), (0x10000, "KV"), (0x18000, "KV"), (0x14000, "KV")]


def kv_first(a, which):
    for rel, tok in which:
        a(f"s_add_u32 s28, s34, {rel}")
        a("s_and_b32 m0, s28, 0x1ffff")
        for k in range(4):
            a(f"buffer_load_dwordx4 v1, {S(SRD_KV)}, s28 offen offset:{k * 1024} sc1 lds", tok_w=[tok])


def phase2(a):
    st = Stream()
    seq = P2_SEQ
    first, lastrow, qdone = {}, {}, {}
    for R, (t, jb) in enumerate(seq):
        first.setdefault(t, R)
        lastrow[t] = R
        for q in range(4):
            k, r = ("a", 32 + (q * 2 + (jb >> 1)) * 8 + (jb & 1) * 4) if jb < 4 else QMAP[(jb - 4, q)]
            for ks in range(2):
                c = "0" if t == 0 and ks == 0 else vr(k, r)
                n = st.mfma(f"{MF} {vr(k, r)}, {vr('a', (R % 3) * 8 + ks * 4)}, {vr('a', 96 + (t & 3) * 32 + q * 8 + ks * 4)}, {c}")
            qdone[(jb, q)] = n
    nm = len(st.m)
    bars = {0: None}
    for t in range(1, 10):
        g = 8 * (first[t] - 2) - 1
        nb = st.put("", g - 1, g - 1, tok_r=["QW%d" % t])
        bars[t] = st.put("s_barrier", g, g, after=nb)
    for k in range(1, 10):
        sstamp(st, 20 + k, 96 * k + 4, 2)
    lastrd = {}
    for R in range(2, len(seq)):
        for k, t in enumerate(p2_wread(R, seq)):
            lastrd[seq[R][0]] = st.put(t, 8 * (R - 2) + (k >> 1), 8 * (R - 2) + 6, after=bars[seq[R][0]])
    prev = None
    adv = {}
    nb, pause, lend = OPT.get("nb", 0), OPT.get("pause", 60), OPT.get("lend", 660)
    todo = [m for m in range(2, 32) if m not in EARLY]
    span = OPT.get("stspan", 700)
    l0 = OPT.get("l0", 2)
    inner = max(0, nb - 1) if OPT.get("lastout", 1) else nb
    step = (lend - l0 - inner * pause) / 104.0
    bursts = [l0 + int((k + 1) * 104 // (inner + 1) * step) + k * pause for k in range(inner)]
    if nb > inner:
        bursts.append(lend + 4)

    def when(n):
        g = l0 + n * step
        for b in bursts[:inner]:
            if g >= b:
                g += pause
        return int(g)

    n = 0
    for t in range(2, 10):
        slot = P2_SLOT[t % 5]
        for mat, e in [(0, 0), (0, 1), (0, 2), (0, 3), (1, 0), (1, 1)]:
            g = max(when(n), 8 * (first[t - 3] - 2) + 2 if t >= 5 else 2)
            aft = [prev, bars[t - 3] if t >= 5 else None]
            m0 = st.put(f"s_add_u32 m0, s{42 + mat}, {slot + e * 1056}", g - 2, g - 1, after=aft)
            so = st.put(f"s_add_u32 s28, s{40 + mat}, {(64 * t + e) * (3456 if mat else 8192)}", g - 2, g - 1, after=aft)
            prev = st.put(f"buffer_load_dwordx4 v{6 - mat}, {S(SRD_WQ + 4 * mat)}, s28 offen{NTD()} lds", g, g + 3,
                          after=[m0, so], dist=1, tok_w=["QW%d" % t])
            n += 1
        if t == 9:
            break
        for q in range(4):
            for ks in range(2):
                g = max(when(n), 8 * lastrow[t - 3] + 8 if t >= 3 else 0)
                prev = st.put(p2_xload(t + 1, q, ks), g, g + 3, after=[prev, adv.get(q)])
                n += 1
            if t & 1 == 0 and t < 8:
                adv[q] = st.put(f"s_add_u32 s{44 + q}, s{44 + q}, 4096", g + 1, g + 10, after=prev)
    p = None
    for k, m in enumerate(todo):
        if nb:
            per = -(-len(todo) // nb)
            g = bursts[k // per] + (k % per) * OPT.get("bgap", 2)
            span = g
        else:
            g = 6 + (k * span) // len(todo)
        if (m & 3) == 1:
            p = st.put("s_add_u32 s93, s93, 4096", g - 1, g - 1, after=p)
        p = st.put(f"buffer_store_dwordx4 {vr('v', pair_base(m)[1])}, v1, {S(SRD_WS)}, s93 offen offset:{(m & 3) * 1024} sc1"
                   if not OPT.get("nost") else "s_nop 0", g, g + 2, after=p, tok_w=["KVS"])
    laststore = p
    sc = Asm()
    sc(f"s_lshl_b32 s28, {S_H}, 20")
    sc(f"s_add_u32 s28, s28, {WS_KV}")
    sc(f"s_add_u32 s{SRD_KV}, s{PTR + 22}, s28\ns_addc_u32 s{SRD_KV + 1}, s{PTR + 23}, 0")
    g0 = 26
    glue = "\n".join(i.text for i in sc.ins)
    p = st.put(f"s_and_b32 s{SRD_KV + 1}, s{SRD_KV + 1}, 0xffff", g0, g0, pre=glue.replace("s28", "s29"))
    for txt in (f"s_sub_u32 s{SRD_KV + 2}, 16, {S_I}", f"s_lshl_b32 s{SRD_KV + 2}, s{SRD_KV + 2}, 16",
                f"s_mov_b32 s{SRD_KV + 3}, 0x20000", f"s_lshl_b32 s34, {S_W}, 12", f"s_lshl_b32 s35, {S_H}, 7"):
        p = st.put(txt, g0 + 1, 90, after=p)
    p = st.put(f"s_cselect_b32 s36, s35, {OOB}", g0 + 2, 95, after=p, pre=f"s_cmp_eq_u32 {S_W}, 0")
    p = st.put(f"s_add_u32 s37, {S_HL}, 1", g0 + 2, 100, after=p)
    p = st.put("s_cselect_b32 s37, 0, s37", g0 + 2, 110, after=p, pre="s_cmp_eq_u32 s37, 7")
    p = st.put(f"s_cselect_b32 s37, s37, {S_HL}", g0 + 2, 120, after=p, pre=f"s_cmp_eq_u32 {S_J}, 3")
    p = st.put("s_lshl_b32 s37, s37, 11", g0 + 2, 130, after=p)
    p = st.put(f"s_cselect_b32 s37, {OOB}, s37", g0 + 2, 140, after=p, pre=f"s_cmp_eq_u32 {S_HL}, 7")
    gs = span + OPT.get("sigd", 80)
    nb = st.put("", gs, gs, after=laststore, tok_r=["KVS"])
    bs = st.put("s_barrier", gs + 1, gs + 1, after=nb)
    sg = st.put(sig_text("s36"), gs + 2, gs + 4, after=bs)
    gp = OPT.get("pollg", 880)
    pl = f"buffer_load_dword v14, off, {S(SRD_WS)}, s35 sc1"
    pld = st.put(pl, gp, gp + 2, after=sg)
    cmp_, br, lab = poll_text(pl, "v14", 8, "s2")
    p = st.put(cmp_, gp + 40, gp + 40, after=pld)
    chk = st.put(lab, gp + 44, gp + 44, after=p, pre=br)
    rel8 = st.put("s_barrier", 8 * lastrow[8] + 11, 8 * lastrow[8] + 11)
    p = [chk, rel8]
    g = gp + 46
    for rel, tok in KV_FIRST[:5]:
        p = st.put(f"s_add_u32 s28, s34, {rel}", min(g - 1, nm - 1), min(g, nm - 1), after=p)
        p = st.put("s_and_b32 m0, s28, 0x1ffff", min(g - 1, nm - 1), min(g, nm - 1), after=p)
        for k in range(4):
            p = st.put(f"buffer_load_dwordx4 v1, {S(SRD_KV)}, s28 offen offset:{k * 1024} sc1 lds", min(g, nm - 1),
                       min(g + 2, nm - 1), after=p, dist=1, tok_w=[tok])
            g += 4
        if g > nm:
            break
    rest = KV_FIRST[KV_FIRST.index((rel, tok)) + 1:5]
    tail = Asm()
    f0 = 8 * (first[7] + 12) + 5
    budget = [OPT.get("silu_in", 5)]
    p = laststore
    for q in range(4):
        for pr in range(2):
            n = q * 2 + pr
            base = 16 + (n & 1) * 40
            x = [base + 8 * (k >> 2) + (k & 3) for k in range(8)]
            t = [base + 16 + 8 * (k >> 2) + (k & 3) for k in range(8)]
            o = base + 32
            ops = [f"v_accvgpr_read_b32 v{x[k]}, a{32 + n * 8 + k}" for k in range(8)]
            ops += [f"v_mul_f32 v{t[k]}, 0xbfb8aa3b, v{x[k]}" for k in range(8)]
            ops += [f"v_exp_f32 v{t[k]}, v{t[k]}" for k in range(8)]
            ops += [f"v_add_f32 v{t[k]}, 1.0, v{t[k]}" for k in range(8)]
            ops += [f"v_rcp_f32 v{t[k]}, v{t[k]}" for k in range(8)]
            ops += [f"v_mul_f32 v{x[k]}, v{x[k]}, v{t[k]}" for k in range(8)]
            ops += [f"v_cvt_pk_bf16_f32 v{o + k}, v{x[2 * k]}, v{x[2 * k + 1]}" for k in range(4)]
            sto = f"buffer_store_dwordx4 {vr('v', o)}, v1, {S(SRD_WS)}, s30 offen offset:{pr * 1024} sc1"
            adr = f"s_add_u32 s30, s{48 + q}, s37"
            if n < budget[0]:
                for k, op in enumerate(ops):
                    p = st.put(op, f0, nm - 1, after=p)
                p = st.put(sto, f0, nm - 1, after=p, dist=1, pre=adr, tok_w=["H"])
            else:
                for op in ops:
                    tail(op)
                tail(adr)
                tail(sto, tok_w=["H"])
    over = st.emit(a)
    print("p2 overflow", over, "tail", st.tail, file=sys.stderr)
    stamp(a, 7)
    work = Asm()
    for ks in range(4):
        for q in range(4):
            src = []
            for h in range(2):
                k, r = QMAP[(2 * ks + h, q)]
                if k == "a":
                    for e in range(4):
                        work(f"v_accvgpr_read_b32 v{8 + e}, a{r + e}")
                    r = 8
                for e in (0, 2):
                    work(f"v_pk_mul_f32 v[{r + e}:{r + e + 1}], v[{r + e}:{r + e + 1}], s[0:1]")
                src += [r, r + 2]
            for e in range(4):
                work(f"v_cvt_pk_bf16_f32 v{V_Q + (q * 4 + ks) * 4 + e}, v{src[e]}, v{src[e] + 1}")
    a(f"s_mov_b32 s0, {hex(Q_SCALE)}\ns_mov_b32 s1, {hex(Q_SCALE)}")
    w = list(tail.ins) + list(work.ins)
    for k in range(4):
        a(f"v_mov_b32 v{V_ONE + k}, 0")
    z = Asm()
    for r in [96, 112] + list(range(160, 256, 16)):
        z(f"v_mfma_f32_32x32x16_bf16 {vr('a', r, 16)}, {vr('v', V_ONE)}, {vr('v', V_ONE)}, 0")
    for k, i in enumerate(z.ins):
        w.insert(4 + 9 * k, i)
    for rel, tok in rest:
        a(f"s_add_u32 s28, s34, {rel}")
        a("s_and_b32 m0, s28, 0x1ffff")
        for k in range(4):
            for _ in range(10):
                a.add(w.pop(0))
            a(f"buffer_load_dwordx4 v1, {S(SRD_KV)}, s28 offen offset:{k * 1024} sc1 lds", tok_w=[tok])
    for i in w:
        a.add(i)


LDS_FLAG = 163824
S_MASK = 88
SRD_W2, SRD_WO, SRD_CUR, SRD_AA = 16, 20, 24, 40
P4_ST = 20480
V4_RD, V4_DM = 244, 248
P4_A = [[64, 68, 72, 76], [120, 124, 136, 140], [16, 20, 24, 28], [32, 36, 40, 44]]
P4_ACC = 144


P4_SEL = [("s_cmp_lt_u32 s97, 7\n"
           f"s_cselect_b64 s[{SRD_CUR}:{SRD_CUR + 1}], s[{SRD_W2}:{SRD_W2 + 1}], s[{SRD_WO}:{SRD_WO + 1}]", None),
          (f"s_cmp_lt_u32 s97, 7\ns_cselect_b32 s{SRD_CUR + 2}, s{SRD_W2 + 2}, s{SRD_WO + 2}", None),
          ("s_cmp_lt_u32 s97, 7\ns_cselect_b32 s31, s44, s45", None),
          (f"s_cmp_lt_u32 s97, 23\ns_cselect_b32 s{SRD_CUR + 2}, s{SRD_CUR + 2}, 0", None)]


def p4_dma(tok, early=False):
    out = [("s_mov_b32 m0, s96", None)]
    for p in range(5):
        if p == 4:
            out.append(("s_add_u32 m0, s96, 4096", None))
        src = f"{S(SRD_W2)}, s44" if early else f"{S(SRD_CUR)}, s31"
        out.append((f"buffer_load_dwordx4 v{V4_DM + p}, {src} offen offset:{1024 * p if p < 4 else 0}{NTD()} lds", tok))
    out += [(f"s_add_u32 s96, s96, {P4_ST}", None), ("s_add_u32 s44, s44, 81920", None)]
    if early:
        return out
    out += [("s_cmp_ge_u32 s96, s1\ns_cselect_b32 s96, s0, s96", None),
            ("s_add_u32 s45, s45, 81920", None), ("s_add_u32 s97, s97, 1", None)]
    return out + P4_SEL


def p4_aload(t):
    out = []
    for r in range(2):
        for ks in range(2):
            out.append(f"buffer_load_dwordx4 {vr('v', P4_A[t & 3][r * 2 + ks])}, v1, {S(SRD_AA)}, s{46 + r} offen offset:{ks * 1024} sc1")
        out.append(f"s_add_u32 s{46 + r}, s{46 + r}, 2048")
    return out


def chain(st, items, lo, hi, after, tail=None):
    ismem = lambda t: t.startswith("buffer") or t.startswith("global")
    nv = sum(1 for t, _ in items if ismem(t))
    k, p, lastmem = 0, after, None
    for t, tok in items:
        g = lo + (k * (hi - lo)) // max(nv, 1)
        gp = lo + ((k - 1) * (hi - lo)) // max(nv, 1) + 1 if k else lo - 2
        ls = t.split("\n")
        if ismem(t):
            p = lastmem = st.put(t, g, g + 2, after=p, dist=1, tok_w=[tok] if tok else ())
            k += 1
        else:
            p = st.put(ls[-1], gp, tail if k == nv and tail else max(gp, g - 1), after=p, pre="\n".join(ls[:-1]) or None)
    return lastmem, nv


def att_step(a, mode, groups, final=False, label=None):
    st = Stream()
    single = mode == "single"
    kbuf = [a_x, a_y]
    vbuf = [a_x, a_y] if single else [a_y]
    cend, kdead = {}, {}
    for g, (q, t, nkb, diag) in enumerate(groups):
        for kb in range(nkb):
            s = vr("v", V_S + (g * 4 + kb) * 4)
            c = vr("v", V_ND + (q & 1) * 4) if diag and kb == nkb - 1 else vr("v", V_NM + q * 4)
            for ks in range(4):
                n = st.mfma(f"{MF} {s}, {vr('a', kbuf[t](kb * 4 + ks))}, {vr('v', V_Q + (q * 4 + ks) * 4)}, "
                            f"{c if ks == 0 else s}")
                kdead[(t, kb * 4 + ks)] = n
            cend[(g, kb)] = n
    nqk = len(st.m)
    pstart, vfirst, vdead = {}, {}, {}
    for g, (q, t, nkb, diag) in enumerate(groups):
        nks = (nkb + 1) // 2
        l = vr("v", V_L + q * 4)
        for db in range(8):
            o = vr("a", a_o(q * 8 + db))
            for ks in range(nks):
                n = st.mfma(f"{MF} {o}, {vr('a', vbuf[t](db * 2 + ks))}, {vr('v', V_P + (g * 2 + ks) * 4)}, {o}")
                pstart.setdefault((g, ks), n)
                vfirst.setdefault((t, db * 2 + ks), n)
                vdead[(t, db * 2 + ks)] = n
        for ks in range(nks):
            st.mfma(f"{MF} {l}, {vr('v', V_ONE)}, {vr('v', V_P + (g * 2 + ks) * 4)}, {l}")
    nm = len(st.m)
    for g, (q, t, nkb, diag) in enumerate(groups):
        for kb in range(nkb):
            dl = pstart[(g, kb >> 1)] - 2
            s = V_S + (g * 4 + kb) * 4
            ex = [st.put(f"v_exp_f32 v{s + r}, v{s + r}", cend[(g, kb)] + 5, dl - 1) for r in range(4)]
            for h in range(2):
                st.put(f"v_cvt_pk_bf16_f32 v{V_P + (g * 2 + (kb >> 1)) * 4 + (kb & 1) * 2 + h}, v{s + 2 * h}, v{s + 2 * h + 1}",
                       cend[(g, kb)] + 6, dl, after=ex[2 * h:2 * h + 2], dist=1)
        if nkb & 1:
            for h in range(2):
                st.put(f"v_mov_b32 v{V_P + (g * 2 + (nkb >> 1)) * 4 + 2 + h}, 0", 0, pstart[(g, nkb >> 1)] - 2)

    def half(g0, reads, last_gap, vm=16, extra=None, toks=()):
        w = st.put("", g0, g0, tok_r=toks) if toks else None
        w = st.put("s_waitcnt vmcnt(%d) lgkmcnt(0)" % vm, g0, g0, after=w)
        gb = g0 + 1 if g0 >= 0 else g0
        bar = st.put("s_barrier", gb, gb, after=w)
        its = [st.put(t, max(lo, g0 + 1), max(hi, g0 + 2), after=[bar] + list(aft)) for t, lo, hi, aft in reads]
        if extra is None:
            extra = [("s_add_u32 s28, s32, 0x8000", None), ("s_and_b32 m0, s28, 0x1ffff", None)]
            for k in range(8):
                if k == 4:
                    extra.append(("s_and_b32 m0, s33, 0x1ffff", None))
                extra.append((f"buffer_load_dwordx4 v1, {S(SRD_KV)}, {'s28' if k < 4 else 's33'} offen offset:{(k & 3) * 1024} sc1 lds", None))
            extra += [("s_mov_b32 s32, s33", None), ("s_add_u32 s33, s33, s36", None), ("s_xor_b32 s36, s36, 0x8000", None)]
        _, nv = chain(st, extra, g0 + 4, last_gap - 4, bar)
        return its, nv

    def vreads(t, reg, off):
        out = []
        for db in range(8):
            for ks in range(2):
                f = db * 2 + ks
                if (t, f) not in vfirst:
                    continue
                lo = kdead.get((t, f), -1) + 1 if single else 0
                out.append((f"ds_read_b128 {vr('a', vbuf[t](f))}, {reg} offset:{off + (ks * 8 + db) * 1024}",
                            lo, vfirst[(t, f)] - 7, ()))
        return out

    def kreads(buf, reg, off, dead, hi, aft=(), only=None):
        return [(f"ds_read_b128 {vr('a', buf(f))}, {reg} offset:{off + f * 1024}", dead(f) + 1, hi(f), aft)
                for f in range(16) if only is None or f in only]

    if single:
        need_b = {f for (t, f) in kdead if t == 1}
        firstb = {}
        n = 0
        for g, (q, t, nkb, diag) in enumerate(groups):
            for f in range(nkb * 4):
                if t == 1:
                    firstb.setdefault(f, n)
                n += 1
        r0 = kreads(a_y, "v2", 0x4000, lambda f: -1, lambda f: firstb[f] - 7, only=need_b) + vreads(0, "v2", 0x8000)
        r1 = vreads(1, "v2", 0xc000)
        if final:
            pl = f"buffer_load_dword v11, off, {S(SRD_WS)}, s35 sc1"
            pld = st.put(pl, -1)
            _, nv = half(-1, r0, nqk, extra=p4_dma("OW0", True), vm=17)
            cmp_, br, lab = poll_text(pl, "v11", 8, "s3h%d" % final)
            p = st.put(cmp_, nqk - 6, nqk - 6, after=pld)
            st.put(lab, nqk - 2, nqk - 2, after=p, pre=br)
            e1 = [(t, None) for t in p4_aload(0)] + p4_dma("OW1", True)
            half(nqk - 1, r1, nm + 2, vm=9 + nv, extra=e1)
        else:
            half(0, r0, nqk)
            x = st.put("v_xor_b32 v3, 0x10000, v2", 0, nqk)
            r1 += kreads(a_x, "v3", 0, lambda f: vdead[(0, f)], lambda f: nm - 12 + (f >> 2) * 2, aft=[x])
            its, _ = half(nqk - 1, r1, nm)
            st.put("v_mov_b32 v2, v3", nm - 3, nm - 1, after=its + [x])
    else:
        t = Asm()
        p4_setup(t)
        cut = [k for k, i in enumerate(t.ins) if i.text.startswith(f"v_subrev_u32 v{V4_DM + 2},")][0] + 1
        setup = [Asm(), Asm()]
        setup[0].ins, setup[1].ins = t.ins[:cut], t.ins[cut:]
        voff = 0xc000 if mode == "dualB" else 0x8000
        dead = lambda f: kdead.get((0, f), -1)
        hi = lambda f: nm - 12 + (f >> 2) * 2
        if mode == "dualA":
            half(0, vreads(0, "v2", voff) + kreads(a_x, "v2", 0x4000, dead, hi), nm)
            spread(st, setup[0], 2, nm - 2)
        elif mode == "dualB":
            x = st.put("v_xor_b32 v3, 0x10000, v2", 0, nqk - 20)
            its, _ = half(0, vreads(0, "v2", voff) + kreads(a_x, "v3", 0, dead, hi, aft=[x]), nm, toks=["H"])
            st.put("v_mov_b32 v2, v3", nm - 3, nm - 1, after=its + [x])
            spread(st, setup[1], 2, nm - 2)
        else:
            its, _ = half(0, vreads(0, "v2", voff) + kreads(a_x, "v3", 0, dead, hi), nm)
            p = st.put("v_mov_b32 v2, v3", nm - 4, nm - 3, after=its)
            p = st.put("v_add_u32 v3, s37, v3", nm - 4, nm - 2, after=p)
            st.put("v_and_b32 v3, 0x1ffff, v3", nm - 4, nm - 1, after=p)
            st.put("s_xor_b32 s37, s37, 0x8000", nm - 2, nm - 2, after=p)
    if label:
        st.put("s_sub_u32 s35, s35, 1", nm - 8, nm - 6)
        a(".p2align 3")
        a(label + ":")
    over = st.emit(a, search=True)
    return over, nm


def att_diag_bias(a, q0):
    a(f"v_mov_b32 v{V_T}, 0xf149f2ca")
    for h in range(2):
        for r in range(4):
            a(f"v_cndmask_b32 v{V_ND + h * 4 + r}, v{V_T}, v{V_NM + (q0 + h) * 4}, s[{S_MASK + 2 * r}:{S_MASK + 2 * r + 1}]")


def att_check(a, q0):
    for q in (q0, q0 + 1):
        l = V_L + q * 4
        a(f"v_cmp_nlt_f32 vcc, 0x21800000, v{l}")
        a(f"v_cmp_ngt_f32 s[28:29], v{V_T + 1}, v{l}")
        a(f"v_rcp_f32 v{l}, v{l}")
        a("s_or_b64 s[62:63], s[62:63], vcc")
        a("s_or_b64 s[62:63], s[62:63], s[28:29]")


def att_finish(a, q0, mix=()):
    mix = list(mix)
    held = []
    a(f"s_lshl_b32 s29, {S_HL}, 12")
    a(f"s_add_u32 s29, s29, {14 * 1024}")
    for q in (q0, q0 + 1):
        l = V_L + q * 4
        a(f"s_add_u32 s30, s{48 + q}, s29")
        for dp in range(4):
            x = V_T + (dp & 1) * 12
            for k in range(8):
                a(f"v_accvgpr_read_b32 v{x + k}, a{a_o(q * 8 + dp * 2) + k}")
                while mix and k in (0, 4):
                    t, tok = mix.pop(0)
                    a(t, tok_w=[tok] if tok else ())
                    if t.startswith("buffer"):
                        break
            for k in range(0, 8, 2):
                a(f"v_pk_mul_f32 v[{x + k}:{x + k + 1}], v[{x + k}:{x + k + 1}], v[{l}:{l + 1}] op_sel_hi:[1,0]")
            for k in range(4):
                a(f"v_cvt_pk_bf16_f32 v{x + 8 + k}, v{x + 2 * k}, v{x + 2 * k + 1}")
            a(f"buffer_store_dwordx4 {vr('v', x + 8)}, v1, {S(SRD_WS)}, s30 offen offset:{dp * 1024} sc1", tok_w=["CTX"])
    for t, tok in mix:
        a(t, tok_w=[tok] if tok else ())


def rowmax_to_negm(a, src):
    for sw in ("v_permlane16_swap_b32", "v_permlane32_swap_b32"):
        for q in range(4):
            a(f"v_mov_b32 v{V_T + q}, v{src(q)}")
        for q in range(4):
            a(f"{sw} v{src(q)}, v{V_T + q}")
        for q in range(4):
            a(f"v_max_f32 v{src(q)}, v{src(q)}, v{V_T + q}")
    for q in range(4):
        for r in range(4):
            a(f"v_sub_f32 v{V_NM + q * 4 + r}, 0, v{src(q)}")


def p4_scalars(a):
    a(f"s_sub_u32 s28, 15, {S_I}")
    a(f"s_bitcmp1_b32 {S_HL}, 0 ;scc")
    a(f"s_cselect_b32 s29, s28, {S_I}")
    a("s_lshl_b32 s29, s29, 3")
    a(f"s_lshl_b32 s30, {S_W}, 1")
    a("s_add_u32 s29, s29, s30")
    a(f"s_mul_i32 s29, s29, {A_RB}")
    a(f"s_mul_i32 s30, {S_J}, {46 * 1024}")
    a("s_add_u32 s29, s29, s30")
    a(f"s_add_u32 s46, s29, {WS_A}")
    a(f"s_add_u32 s47, s46, {A_RB}")
    a(f"s_mul_i32 s29, {S_W}, {16 * 1280}")
    a(f"s_lshr_b32 s30, {S_HL}, 1")
    a("s_mul_i32 s30, s30, 320")
    a("s_add_u32 s29, s29, s30")
    a(f"s_mul_i32 s30, {S_J}, 7")
    a("s_min_u32 s30, s30, 20")
    a("s_mul_i32 s30, s30, 81920")
    a("s_add_u32 s44, s29, s30")
    a(f"s_mul_i32 s30, {S_J}, {16 * 81920}")
    a("s_add_u32 s45, s29, s30")
    a(f"s_sub_u32 s45, s45, {5 * 81920}")
    a("s_mov_b32 s97, 2")
    a(f"s_mul_i32 s0, {S_W}, 5120")
    a(f"s_add_u32 s1, s0, {8 * P4_ST}")
    a("s_bitcmp1_b32 s28, 0 ;scc")
    a(f"s_cselect_b32 s29, 0, {4 * P4_ST}")
    a("s_add_u32 s96, s0, s29")
    a(f"s_mov_b32 s{SRD_AA + 2}, {WS_SIZE}")


def p4_setup(a):
    srd(a, SRD_W2, 8, 2211840)
    srd(a, SRD_WO, 5, 5242880)
    a(f"s_mov_b32 s{SRD_AA}, s{SRD_WS}\ns_mov_b32 s{SRD_AA + 1}, s{SRD_WS + 1}\ns_mov_b32 s{SRD_AA + 3}, 0x20000")
    a(f"s_mov_b32 s{SRD_CUR + 3}, 0x20000")
    a("v_lshlrev_b32 v9, 3, v1")
    a(f"s_lshl_b32 s52, {S_H}, 2")
    a(f"s_add_u32 s52, s52, {S_I}")
    a("s_lshl_b32 s52, s52, 2")
    a(f"s_add_u32 s52, s52, {S_W}")
    a("s_mul_i32 s53, s52, 4352")
    a("s_mul_i32 s52, s52, 10240")
    a(f"s_cmp_lt_u32 {S_I}, 4\ns_cselect_b32 s53, s53, {OOB}")
    a(f"s_cmp_lt_u32 {S_I}, 4\ns_cselect_b32 s52, s52, {OOB}")
    if OPT.get("touch6", 1):
        a(f"buffer_load_dword v10, v9, {S(SRD_W2)}, s53 offen")
        a(f"buffer_load_dword v10, v9, {S(SRD_WO)}, s52 offen")
        a(f"buffer_load_dword v10, v9, {S(SRD_WO)}, s52 offen offset:2048")
    a("v_and_b32 v11, 63, v0")
    for p in range(5):
        a(f"v_add_u32 v7, {64 * p}, v11")
        a("v_mul_u32_u24 v8, 0xccd, v7")
        a("v_lshrrev_b32 v8, 16, v8")
        a("v_mul_u32_u24 v14, 20, v8")
        a("v_sub_u32 v7, v7, v14")
        a("v_bfe_u32 v14, v8, 2, 1")
        a("v_lshlrev_b32 v14, 1, v14")
        a("v_xor_b32 v7, v7, v14")
        a("v_mul_u32_u24 v8, 0x500, v8")
        a("v_lshl_add_u32 v7, v7, 4, v8")
        a(f"v_subrev_u32 v{V4_DM + p}, {1024 * p if p < 4 else 0}, v7")
    t = Asm()
    p4_scalars(t)
    for i in t.ins:
        a(i.text.replace("s28", "s52").replace("s29", "s53").replace("s30", "s54"))
    a("v_bfe_u32 v11, v0, 2, 4")
    a("v_mul_u32_u24 v11, 0x140, v11")
    a("v_and_b32 v14, 3, v0")
    a("v_lshl_add_u32 v11, v14, 3, v11")
    a("v_add_u32 v11, s53, v11")
    a("v_bfe_u32 v14, v0, 4, 1")
    a("v_lshlrev_b32 v14, 5, v14")
    a(f"v_add_u32 v{V4_RD}, v11, v14")
    a("v_xor_b32 v14, 32, v14")
    a(f"v_add_u32 v{V4_RD + 1}, v11, v14")
    a(f"v_add_u32 v{V4_RD + 2}, {2 * P4_ST}, v{V4_RD}")
    a(f"v_add_u32 v{V4_RD + 3}, {2 * P4_ST}, v{V4_RD + 1}")
    a("s_lshl_b32 s55, s53, 1")
    a(f"s_sub_u32 s55, {4 * P4_ST}, s55")


def spread(st, asm, lo, hi):
    txt = [i.text for i in asm.ins]
    p, k = None, 0
    while k < len(txt):
        n = 2 if txt[k].startswith("s_cmp") or txt[k].startswith("s_bitcmp") or "s_addc" in "".join(txt[k + 1:k + 2]) else 1
        mem = txt[k + n - 1].startswith("buffer")
        p = st.put(txt[k + n - 1], lo, min(hi, lo + 30 + ((k + 1) * (hi - lo)) // len(txt)), after=p, pre=txt[k] if n == 2 else None,
                   dist=1 if mem else 0)
        k += n
    return p


def phase3(a):
    info = []
    a("s_mov_b32 s38, 0")
    a("v_bfe_u32 v7, v0, 4, 2")
    a("v_and_b32 v8, 15, v0")
    a("v_lshlrev_b32 v7, 2, v7")
    for r in range(4):
        a(f"v_add_u32 v9, {r}, v7")
        a(f"v_cmp_le_u32 s[{S_MASK + 2 * r}:{S_MASK + 2 * r + 1}], v9, v8")
    for r in range(4):
        a(f"v_mov_b32 v{V_ONE + r}, 0x3f803f80")
    a("L_att:")
    a("s_mov_b64 s[62:63], 0")
    a("s_add_u32 s32, s34, 0x14000")
    a("s_add_u32 s33, s34, 0x20000")
    a("s_mov_b32 s36, 0x4000")
    a("s_mov_b32 s37, 0xc000")
    a("v_mov_b32 v2, v1")
    a("v_add_u32 v3, 0x4000, v1")
    for r in range(16):
        a(f"v_mov_b32 v{V_L + r}, 0")
    stamp(a, 8)
    a.need("K0")
    a("s_barrier")
    stamp(a, 9)
    for f in range(16):
        a(f"ds_read_b128 {vr('a', a_x(f))}, v2 offset:{f * 1024}")
    kv_first(a, KV_FIRST[5:])
    a("s_cmp_lg_u32 s38, 0")
    a("s_cbranch_scc1 L_att_go")
    for q in range(4):
        for ks in range(4):
            s = vr("v", V_S + q * 4)
            a(f"{MF} {s}, {vr('a', a_x(ks))}, {vr('v', V_Q + (q * 4 + ks) * 4)}, {'0' if ks == 0 else s}")
    for q in range(4):
        s = V_S + q * 4
        a(f"v_max3_f32 v{s}, v{s}, v{s + 1}, v{s + 2}")
        a(f"v_max_f32 v{s}, v{s}, v{s + 3}")
    rowmax_to_negm(a, lambda q: V_S + q * 4)
    a("L_att_go:")
    att_diag_bias(a, 2)
    stamp(a, 10)
    full = lambda q, t=0: (q, t, 4, False)
    a(f"s_lshl_b32 s35, {S_I}, 1")
    a("s_cmp_eq_u32 s35, 0")
    a("s_cbranch_scc1 L_att_d")
    info.append(att_step(a, "dual", [full(0), full(1), full(2), full(3)], label="L_att_dual"))
    a("s_cmp_lg_u32 s35, 0")
    a("s_cbranch_scc1 L_att_dual")
    a("L_att_d:")
    stamp(a, 11)
    for w in range(4):
        if w < 3:
            a(f"s_cmp_lg_u32 {S_W}, {w}")
            a(f"s_cbranch_scc1 L_att_d{w + 1}")
        info.append(att_step(a, "dualA", [full(0), full(3), (2, 0, w + 1, True), full(1)]))
        info.append(att_step(a, "dualB", [full(0), (3, 0, 4 - w, True), full(1)]))
        if w < 3:
            a("s_branch L_att_dd")
            a(f"L_att_d{w + 1}:")
    a("L_att_dd:")
    stamp(a, 12)
    a(f"s_lshl_b32 s28, {S_J}, 3")
    a(f"s_add_u32 s28, s28, {S_I}")
    a(f"s_add_u32 s28, s28, {C_H}")
    sig_off(a, "s29", "s28")
    a("s_cmp_eq_u32 s38, 0")
    a(f"s_cselect_b32 s29, s29, {OOB}")
    a(sig_text("s29"))
    a(f"v_mov_b32 v{V_T + 1}, 0x5d800000")
    att_check(a, 2)
    att_finish(a, 2)
    att_diag_bias(a, 0)
    stamp(a, 13)
    a(f"s_lshl_b32 s35, {S_I}, 1")
    a("s_sub_u32 s35, 14, s35")
    a("s_cmp_eq_u32 s35, 0")
    a("s_cbranch_scc1 L_att_e")
    info.append(att_step(a, "single", [full(0), full(1), full(0, 1), full(1, 1)], label="L_att_single"))
    a("s_cmp_lg_u32 s35, 0")
    a("s_cbranch_scc1 L_att_single")
    a("L_att_e:")
    stamp(a, 14)
    a(f"s_lshl_b32 s28, {S_J}, 3")
    a(f"s_add_u32 s28, s28, {S_I}")
    a(f"s_add_u32 s28, s28, {C_H}")
    a("s_lshl_b32 s35, s28, 7")
    for w in range(4):
        if w < 3:
            a(f"s_cmp_lg_u32 {S_W}, {w}")
            a(f"s_cbranch_scc1 L_att_e{w + 1}")
        info.append(att_step(a, "single", [full(1), (0, 0, w + 1, True), (1, 1, 4 - w, True)], final=w + 1))
        if w < 3:
            a("s_branch L_att_ee")
            a(f"L_att_e{w + 1}:")
    a("L_att_ee:")
    stamp(a, 15)
    a(f"v_mov_b32 v{V_T + 1}, 0x5d800000")
    att_check(a, 0)
    a("s_cmp_lg_u64 s[62:63], 0")
    a("s_cselect_b32 s28, 1, 0")
    a(f"s_lshl_b32 s29, {S_W}, 2")
    a(f"s_add_u32 s29, s29, {LDS_FLAG}")
    a("v_mov_b32 v7, s29")
    a("v_mov_b32 v8, s28")
    a("ds_write_b32 v7, v8")
    a(f"v_mov_b32 v7, {LDS_FLAG}")
    mix = [(t, None) for t in p4_aload(1)] + P4_SEL
    att_finish(a, 0, mix)
    a.need("OW0")
    a("s_waitcnt lgkmcnt(0)")
    a("s_barrier")
    a("ds_read_b128 v[8:11], v7")
    a("v_or3_b32 v8, v8, v9, v10")
    a("v_or_b32 v8, v8, v11")
    a("v_readfirstlane_b32 s28, v8")
    a("s_cmp_gt_u32 s28, s38")
    a("s_cbranch_scc1 L_att_redo")
    b = Asm()
    b("L_att_redo:")
    b("s_mov_b32 s38, 1")
    rowblocks(b, 44, 16, 0)
    b("v_and_b32 v8, 15, v0")
    b("v_bfe_u32 v7, v0, 4, 2")
    b("v_lshlrev_b32 v7, 2, v7")
    for q in range(4):
        b(f"v_add_u32 v{V_P + q}, s{44 + q}, v8")
        b(f"v_mov_b32 v{V_P + 4 + q}, 0xf149f2ca")
    b(f"s_sub_u32 s35, 16, {S_I}")
    b("s_lshl_b32 s35, s35, 3")
    b("s_mov_b32 s39, 0")
    b("L_att_max:")
    b("s_lshr_b32 s28, s39, 3")
    b("s_lshl_b32 s28, s28, 16")
    b("s_and_b32 s29, s39, 7")
    b("s_lshl_b32 s29, s29, 12")
    b("s_add_u32 s28, s28, s29")
    for ks in range(4):
        b(f"buffer_load_dwordx4 {vr('a', a_x(ks))}, v1, {S(SRD_KV)}, s28 offen offset:{ks * 1024} sc1")
    b("s_waitcnt vmcnt(0)")
    for q in range(4):
        for ks in range(4):
            s = vr("v", V_S + q * 4)
            b(f"{MF} {s}, {vr('a', a_x(ks))}, {vr('v', V_Q + (q * 4 + ks) * 4)}, {'0' if ks == 0 else s}")
    for r in range(4):
        b(f"v_add_u32 v14, {r}, v7")
        for q in range(4):
            b(f"v_cmp_le_u32 vcc, v14, v{V_P + q}")
            b(f"v_max_f32 v10, v{V_P + 4 + q}, v{V_S + q * 4 + r}")
            b(f"v_cndmask_b32 v{V_P + 4 + q}, v{V_P + 4 + q}, v10, vcc")
    b("v_add_u32 v7, 16, v7")
    b("s_add_u32 s39, s39, 1")
    b("s_cmp_lt_u32 s39, s35")
    b("s_cbranch_scc1 L_att_max")
    rowmax_to_negm(b, lambda q: V_P + 4 + q)
    for n in range(32):
        for k in range(4):
            b(f"v_accvgpr_write_b32 a{a_o(n) + k}, 0")
    b("s_barrier")
    kv_first(b, KV_FIRST[:5])
    b("s_branch L_att")
    SLOW.append(b)
    print("attention steps (overflow slots, mfmas):", info, file=sys.stderr)


def p4_acc(cb, r):
    return P4_ACC + (r * 10 + cb) * 4


def p4_wread(sub, cb, ks, hf):
    reg = V4_RD + (cb & 1) + (2 if sub >= 2 else 0)
    off = (sub & 1) * P4_ST + ks * 10240 + hf * 5120 + (cb >> 1) * 64
    return f"ds_read_b64_tr_b16 {vr('a', (cb % 5) * 8 + ks * 4 + hf * 2, 2)}, v{reg} offset:{off}"


def phase4(a):
    for cb in range(3):
        for ks in range(2):
            for hf in range(2):
                a(p4_wread(0, cb, ks, hf))
    a(f"s_lshl_b32 s28, {S_J}, 3")
    a(f"s_add_u32 s28, s28, {S_I}")
    a(f"s_add_u32 s28, s28, {C_CTX}")
    a("s_lshl_b32 s35, s28, 7")
    sig_off(a, "s36", "s28")
    for k in range(4):
        a(f"v_mov_b32 v{96 + k}, 0")
    for r in range(P4_ACC, P4_ACC + 80, 16):
        a(f"v_mfma_f32_32x32x16_bf16 {vr('v', r, 16)}, v[96:99], v[96:99], 0")
    a("s_mov_b32 s32, 0")
    stamp(a, 16)
    a(".p2align 3")
    a("L_p4:")
    over = 0
    pl = f"buffer_load_dword v11, off, {S(SRD_WS)}, s35 sc1"
    for sub in range(4):
        st = Stream()
        for cb in range(10):
            for r in range(2):
                c = vr("v", p4_acc(cb, r))
                for ks in range(2):
                    st.mfma(f"{MF} {c}, {vr('a', (cb % 5) * 8 + ks * 4)}, {vr('v', P4_A[sub][r * 2 + ks])}, {c}")
        last = None
        for cb in range(3, 10):
            for k in range(4):
                last = st.put(p4_wread(sub, cb, k >> 1, k & 1), 4 * (cb - 3) + k, 4 * (cb - 3) + k + 1)
        nb = st.put("", 26, 26, tok_r=["OW%d" % ((sub + 1) & 3)] + (["CTX"] if sub == 2 else []))
        bar = st.put("s_barrier", 27, 27, after=nb)
        tog = []
        if sub == 3:
            tog = [st.put(f"v_add_u32 v{V4_RD + k}, s55, v{V4_RD + k}", 2 + 2 * k, 12) for k in range(2)]
            tog2 = [st.put(f"v_add_u32 v{V4_RD + 2 + k}, s55, v{V4_RD + 2 + k}", 30, 36, after=last) for k in range(2)]
            st.put("s_sub_u32 s55, 0, s55", 37, 38, after=tog2)
        for cb in range(3):
            for k in range(4):
                st.put(p4_wread((sub + 1) & 3, cb, k >> 1, k & 1), 28 + 4 * cb + k, min(39, 29 + 4 * cb + k), after=[bar] + tog)
        p, _ = chain(st, p4_dma("OW%d" % ((sub + 2) & 3)), 2, 22, None, tail=36)
        if sub == 2:
            st.put("L_c2b:", 28, 28, after=bar, pre="s_cmp_eq_u32 s32, 2\ns_cbranch_scc1 L_c2")
            b = Asm()
            b("L_c2:")
            b(sig_text("s36"))
            b("s_branch L_c2b")
            SLOW.append(b)
        if sub == 1:
            p = st.put("L_c0b:", 21, 21, after=p, pre="s_cmp_eq_u32 s32, 5\ns_cbranch_scc1 L_c0")
            b = Asm()
            b("L_c0:")
            cmp_, br, lab = poll_text(pl, "v11", 8, "s3c")
            b(cmp_)
            b(br)
            b(lab)
            b("s_branch L_c0b")
            SLOW.append(b)
        if sub == 0:
            st.put("L_c3b:", 33, 33, pre="s_cmp_eq_u32 s32, 4\ns_cbranch_scc1 L_c3")
            b = Asm()
            b("L_c3:")
            b(pl)
            b("s_branch L_c3b")
            SLOW.append(b)
        c = st.put(f"s_cselect_b32 s{SRD_AA + 2}, {WS_SIZE}, 0", 18, 20, pre="s_cmp_lt_u32 s32, 21")
        chain(st, [(t, None) for t in p4_aload(sub + 2)], 23, 39, [p, c])
        st.put("s_add_u32 s32, s32, 1", 37, 38)
        over += st.emit(a)
        a("s_cmp_lt_u32 s32, 23")
        a("s_cbranch_scc0 L_p4_x" if sub < 3 else "s_cbranch_scc1 L_p4")
    a("L_p4_x:")
    print("p4 overflow", over, file=sys.stderr)
    stamp(a, 17)
    srd(a, 16, 0, 2621440)
    srd(a, 20, 9, 2621440)
    a("v_and_b32 v2, 15, v0")
    a("v_mul_u32_u24 v2, 0x500, v2")
    a("v_bfe_u32 v3, v0, 4, 2")
    a("v_lshl_add_u32 v2, v3, 3, v2")
    a("v_lshrrev_b32 v3, 1, v1")
    a(f"s_sub_u32 s28, 15, {S_I}")
    a(f"s_bitcmp1_b32 {S_HL}, 0 ;scc")
    a(f"s_cselect_b32 s34, s28, {S_I}")
    a(f"s_lshr_b32 s35, {S_HL}, 1")
    a("s_lshl_b32 s28, s34, 3")
    a(f"s_lshl_b32 s29, {S_W}, 1")
    a("s_add_u32 s28, s28, s29")
    a(f"s_and_b32 s29, {S_J}, 1")
    a("s_add_u32 s28, s28, s29")
    a(f"s_mul_i32 s32, s28, {16 * 1280}")
    a("s_mul_i32 s28, s35, 320")
    a("s_add_u32 s32, s32, s28")
    a(f"s_lshr_b32 s28, {S_J}, 1")
    a("s_mul_i32 s28, s28, 160")
    a("s_add_u32 s32, s32, s28")
    for k in range(5):
        a(f"buffer_load_dwordx2 {vr('v', 100 + 2 * k, 2)}, v2, {S(16)}, s32 offen offset:{32 * k}")
    a("s_lshl_b32 s33, s34, 2")
    a("s_add_u32 s33, s33, s35")
    a(f"s_mul_i32 s34, s33, {16 * 10240}")
    a(f"s_mul_i32 s28, {S_W}, 2560")
    a("s_add_u32 s34, s34, s28")
    a(f"s_add_u32 s34, s34, {WS_EX}")
    a(f"s_mul_i32 s28, {S_J}, 10240")
    a("s_add_u32 s35, s34, s28")
    a(f"s_mul_i32 s28, {S_J}, 40960")
    a("s_add_u32 s34, s34, s28")
    a(f"s_add_u32 s33, s33, {C_EX}")
    sig_off(a, "s36", "s33")
    a("s_lshl_b32 s33, s33, 7")
    for j in range(4):
        if j < 3:
            a(f"s_cmp_lg_u32 {S_J}, {j}")
            a(f"s_cbranch_scc1 L_ex{j + 1}")
        for o in range(4):
            if o == j:
                continue
            d = 16 + o * 12
            for k in range(5):
                s = p4_acc(5 * (o >> 1) + k, o & 1)
                for e in range(2):
                    a(f"v_cvt_pk_bf16_f32 v{d + 2 * k + e}, v{s + 2 * e}, v{s + 2 * e + 1}")
            a(f"s_add_u32 s28, s35, {o * 40960}")
            a(f"buffer_store_dwordx4 {vr('v', d)}, v1, {S(SRD_WS)}, s28 offen sc1")
            a(f"buffer_store_dwordx4 {vr('v', d + 4)}, v1, {S(SRD_WS)}, s28 offen offset:1024 sc1")
            a(f"buffer_store_dwordx2 {vr('v', d + 8, 2)}, v3, {S(SRD_WS)}, s28 offen offset:2048 sc1")
        for k in range(5):
            s = p4_acc(5 * (j >> 1) + k, j & 1)
            for e in range(4):
                a(f"v_and_b32 v14, 0xffff0000, v{100 + 2 * k + (e >> 1)}" if e & 1 else
                  f"v_lshlrev_b32 v14, 16, v{100 + 2 * k + (e >> 1)}")
                a(f"v_add_f32 v{64 + 4 * k + e}, v{s + e}, v14")
        if j < 3:
            a("s_branch L_exs")
            a(f"L_ex{j + 1}:")
    a("L_exs:")
    a("s_waitcnt vmcnt(0)")
    a("s_barrier")
    a(sig_text("s36"))
    stamp(a, 18)
    a("s_mov_b32 s30, 40000")
    a("L_exp:")
    a(f"buffer_load_dword v11, off, {S(SRD_WS)}, s33 sc1")
    a("s_sub_u32 s30, s30, 1")
    a("v_cmp_gt_u32 vcc, 4, v11")
    a("s_cmp_eq_u32 s30, 0")
    a("s_cbranch_scc1 L_expx")
    a("s_cbranch_vccnz L_exp")
    a("L_expx:")
    stamp(a, 19)
    for n in range(3):
        a(f"s_add_u32 s28, {S_J}, {n + 1}")
        a("s_and_b32 s28, s28, 3")
        a("s_mul_i32 s28, s28, 10240")
        a("s_add_u32 s28, s28, s34")
        d = 16 + n * 12
        a(f"buffer_load_dwordx4 {vr('v', d)}, v1, {S(SRD_WS)}, s28 offen sc1")
        a(f"buffer_load_dwordx4 {vr('v', d + 4)}, v1, {S(SRD_WS)}, s28 offen offset:1024 sc1")
        a(f"buffer_load_dwordx2 {vr('v', d + 8, 2)}, v3, {S(SRD_WS)}, s28 offen offset:2048 sc1")
    for n in range(3):
        for k in range(10):
            a(f"v_lshlrev_b32 v14, 16, v{16 + n * 12 + k}")
            a(f"v_and_b32 v11, 0xffff0000, v{16 + n * 12 + k}")
            a(f"v_add_f32 v{64 + 2 * k}, v{64 + 2 * k}, v14")
            a(f"v_add_f32 v{65 + 2 * k}, v{65 + 2 * k}, v11")
    for k in range(5):
        for e in range(2):
            a(f"v_cvt_pk_bf16_f32 v{112 + 2 * k + e}, v{64 + k * 4 + 2 * e}, v{64 + k * 4 + 2 * e + 1}")
        a(f"buffer_store_dwordx2 {vr('v', 112 + 2 * k, 2)}, v2, {S(20)}, s32 offen offset:{32 * k}")


def build(path):
    a = Asm()
    entry(a)
    phase1_start(a)
    a(f"s_cmp_ge_u32 {S_W}, 2")
    a("s_cbranch_scc1 L_p1_vw")
    o = [phase1_iter(a, False, "k", 0)]
    stamp(a, 5)
    o += [phase1_iter(a, False, "k", m) for m in (5, 6, 7)]
    a("s_branch L_p2")
    a("L_p1_vw:")
    o.append(phase1_iter(a, True, "v", 0))
    stamp(a, 5)
    o += [phase1_iter(a, True, "v", m) for m in (5, 6, 7)]
    print("p1 overflow", o, file=sys.stderr)
    a("L_p2:")
    stamp(a, 6)
    phase2(a)
    phase3(a)
    phase4(a)
    stamp_dump(a)
    a("s_endpgm")
    for b in SLOW:
        a.ins += b.ins
    a("L_end:")
    a("s_endpgm")
    insert_waits(a)
    k = check_hazards(a, fix=True)
    check_scc(a)
    print("instructions", len(a.ins), "hazard pads", k, file=sys.stderr)
    head = open("cdna_kernels/" + NAME + ".s.ref").read().split("; @launch")[0]
    txt = head + "; @launch grid=(256,1,1) block=(256,1,1) lds=163840\n"
    txt += '.amdgcn_target "amdgcn-amd-amdhsa--gfx950"\n.text\n' + a.text() + f"""
.section .rodata,"a"
.p2align 6
.amdhsa_kernel {KN}
  .amdhsa_next_free_vgpr 512
  .amdhsa_next_free_sgpr 102
  .amdhsa_accum_offset 256
  .amdhsa_group_segment_fixed_size 0
  .amdhsa_kernarg_size 96
  .amdhsa_user_sgpr_count 2
  .amdhsa_user_sgpr_kernarg_segment_ptr 1
  .amdhsa_system_sgpr_workgroup_id_x 1
.end_amdhsa_kernel
"""
    open(path, "w").write(txt)


if __name__ == "__main__":
    OPT.update({k: int(v) for k, v in (kv.split("=") for kv in sys.argv[2:])})
    DIAG = bool(OPT.get("diag", 0))
    build(sys.argv[1])
```

```python
import sys
HDR = """.amdgcn_target "amdgcn-amd-amdhsa--gfx950"
.text
"""
def kd(name, vg=512, acc=256):
    return f"""
.section .rodata,"a"
.p2align 6
.amdhsa_kernel {name}
  .amdhsa_next_free_vgpr {vg}
  .amdhsa_next_free_sgpr 102
  .amdhsa_accum_offset {acc}
  .amdhsa_group_segment_fixed_size 0
  .amdhsa_kernarg_size 96
  .amdhsa_user_sgpr_count 2
  .amdhsa_user_sgpr_kernarg_segment_ptr 1
  .amdhsa_system_sgpr_workgroup_id_x 1
.end_amdhsa_kernel
.text
"""
def kernel(name, idx, iters, n_dsr, n_dma, valu, barrier=True, stagger=False, dma_global=False, src_bytes_per_grp=1<<20, nm=64, mfma16=False):
    o = []
    A = o.append
    A(f".globl {name}\n.p2align 8\n.type {name},@function\n{name}:")
    A("s_cmp_ge_u32 s2, 256\ns_cbranch_scc1 L_end_%s" % name)
    A("s_load_dwordx2 s[4:5], s[0:1], 16")
    A("s_load_dwordx2 s[6:7], s[0:1], 88")
    A("s_waitcnt lgkmcnt(0)")
    A("s_mov_b32 s8, s4\ns_mov_b32 s9, s5\ns_mov_b32 s10, 5242880\ns_mov_b32 s11, 0x20000")
    A("s_mov_b32 s12, s6\ns_mov_b32 s13, s7\ns_mov_b32 s14, 0x10000000\ns_mov_b32 s15, 0x20000")
    A("v_lshrrev_b32 v1, 6, v0\ns_nop 0\nv_readfirstlane_b32 s20, v1")
    A("v_lshlrev_b32 v2, 4, v0")
    A("v_and_b32 v3, 63, v0\nv_lshlrev_b32 v3, 4, v3")
    for r in range(8, 252, 4):
        A(f"buffer_load_dwordx4 v[{r}:{r+3}], v2, s[8:11], 0 offen offset:{(r*16)%4096}")
    for r in range(0, 256, 4):
        A(f"buffer_load_dwordx4 a[{r}:{r+3}], v2, s[8:11], 0 offen offset:{(r*16)%4096}")
    A("s_lshl_b32 s21, s20, 10")
    for i in range(32):
        A(f"s_add_u32 s22, s21, {i*4096}\ns_mov_b32 m0, s22\ns_mov_b32 s23, {i*4096}\nbuffer_load_dwordx4 v2, s[8:11], s23 offen lds")
    A("s_waitcnt vmcnt(0)")
    for r in range(0,128): A(f"v_accvgpr_write_b32 a{r}, 0")
    for r in range(64,128): A(f"v_mov_b32 v{r}, 0")
    A("s_and_b32 s24, s2, 7\ns_lshr_b32 s24, s24, 1\ns_mul_i32 s24, s24, %d" % src_bytes_per_grp)
    A("s_mov_b32 s25, 0")
    A("s_barrier")
    A("s_memtime s[30:31]\ns_memrealtime s[32:33]")
    A(f"s_mov_b32 s26, {iters}")
    A(".p2align 6")
    A(f"L_loop_{name}:")
    fill = [[] for _ in range(nm)]
    for i in range(n_dsr):
        slot = (i * nm) // n_dsr
        r = 128 + (i % 16) * 4
        fill[slot].append(f"ds_read_b128 a[{r}:{r+3}], v3 offset:{(i*1024) % 65536}")
    for i in range(n_dma):
        slot = (i * nm) // n_dma + (1 if n_dma <= nm//2 else 0)
        slot = min(slot, nm-1)
        ldsoff = 65536 + i * 4096
        if dma_global:
            fill[slot].append(f"s_add_u32 m0, s21, {ldsoff}")
            fill[slot].append(f"s_add_u32 s28, s27, {i*4096}")
            fill[slot].append(f"buffer_load_dwordx4 v2, s[8:11], s28 offen lds")
        else:
            fill[slot].append(f"s_add_u32 m0, s21, {ldsoff}")
            fill[slot].append(f"s_add_u32 s28, s27, {i*4096}")
            fill[slot].append(f"buffer_load_dwordx4 v2, s[8:11], s28 offen lds")
    if valu:
        for i in range(nm):
            s = 128 + (i % 64)
            fill[i].append(f"v_exp_f32 v{192 + (i%8)}, v{s}")
            fill[i].append(f"v_add_f32 v{200 + (i%2)}, v{200+(i%2)}, v{192 + ((i+6)%8)}")
            if i % 2 == 1:
                fill[i].append(f"v_cvt_pk_bf16_f32 v{204 + (i//2)%8}, v{192 + ((i+4)%8)}, v{192 + ((i+5)%8)}")
    A("s_add_u32 s27, s24, s25")
    A(f"s_add_u32 s25, s25, {max(n_dma,1)*4096}\ns_and_b32 s25, s25, {src_bytes_per_grp-1}")
    for i in range(nm):
        if i < nm//2:
            acc = (i % 8) * 16
            a = 128 + (i % 16) * 4
            b = 8 + (i % 8) * 4
            A(f"v_mfma_f32_32x32x16_bf16 a[{acc}:{acc+15}], a[{a}:{a+3}], v[{b}:{b+3}], a[{acc}:{acc+15}]")
        else:
            acc = 64 + (i % 4) * 16
            a = 128 + (i % 16) * 4
            b = 192 + (i % 8) * 4
            A(f"v_mfma_f32_32x32x16_bf16 v[{acc}:{acc+15}], a[{a}:{a+3}], a[{b}:{b+3}], v[{acc}:{acc+15}]")
        for f in fill[i]: A(f)
    if n_dma: A(f"s_waitcnt vmcnt({min(n_dma,63)})")
    if barrier: A("s_barrier")
    A("s_sub_u32 s26, s26, 1\ns_cmp_lg_u32 s26, 0")
    A(f"s_cbranch_scc1 L_loop_{name}")
    A("s_waitcnt vmcnt(0) lgkmcnt(0)")
    A("s_memtime s[34:35]\ns_memrealtime s[36:37]\ns_waitcnt lgkmcnt(0)")
    A("s_sub_u32 s34, s34, s30\ns_sub_u32 s36, s36, s32")
    A("s_getreg_b32 s38, hwreg(HW_REG_XCC_ID)")
    A("s_lshl_b32 s40, s2, 2\ns_add_u32 s40, s40, s20\ns_lshl_b32 s40, s40, 4\ns_add_u32 s40, s40, %d" % (idx*65536))
    A("v_mov_b32 v8, s34\nv_mov_b32 v9, s36\nv_mov_b32 v10, s38\nv_mov_b32 v11, s32\nv_mov_b32 v12, s40")
    A("s_mov_b64 exec, 1")
    A("buffer_store_dwordx4 v[8:11], v12, s[12:15], 0 offen")
    A("s_waitcnt vmcnt(0)")
    A(f"L_end_{name}:\ns_endpgm")
    return "\n".join(o) + "\n" + kd(name)

variants = [
  ("a_kernel", dict(n_dsr=0, n_dma=0, valu=False, barrier=False)),
  ("b_kernel", dict(n_dsr=32, n_dma=0, valu=False)),
  ("c_kernel", dict(n_dsr=32, n_dma=8, valu=False)),
  ("d_kernel", dict(n_dsr=32, n_dma=8, valu=True)),
  ("e_kernel", dict(n_dsr=64, n_dma=16, valu=True)),
  ("f_kernel", dict(n_dsr=64, n_dma=0, valu=True)),
  ("g_kernel", dict(n_dsr=0, n_dma=16, valu=False)),
  ("h_kernel", dict(n_dsr=0, n_dma=0, valu=True)),
]
if __name__ != "__main__": variants = []
iters = int(sys.argv[1]) if len(sys.argv) > 1 else 20
s = ""
for n, _ in variants:
    s += f"; @launch kernel={n} grid=(256,1,1) block=(256,1,1) lds=160000\n"
s += HDR
for i, (n, kw) in enumerate(variants):
    s += kernel(n, i, iters, **kw)
if __name__ == "__main__": open("mb1.s", "w").write(s)
```

```python
from mb1 import HDR, kd
def kernel(name, idx, rd, dst, dma):
    o = []
    A = o.append
    A(f".globl {name}\n.p2align 8\n.type {name},@function\n{name}:")
    A("s_cmp_ge_u32 s2, 256\ns_cbranch_scc1 L_end_%s" % name)
    A("s_load_dwordx2 s[4:5], s[0:1], 16\ns_load_dwordx2 s[6:7], s[0:1], 88\ns_waitcnt lgkmcnt(0)")
    A("s_mov_b32 s8, s4\ns_mov_b32 s9, s5\ns_mov_b32 s10, 5242880\ns_mov_b32 s11, 0x20000")
    A("s_mov_b32 s12, s6\ns_mov_b32 s13, s7\ns_mov_b32 s14, 0x10000000\ns_mov_b32 s15, 0x20000")
    A("v_lshrrev_b32 v1, 6, v0\ns_nop 0\nv_readfirstlane_b32 s20, v1\nv_lshlrev_b32 v2, 4, v0")
    A("v_and_b32 v3, 63, v0\nv_lshlrev_b32 v4, 3, v3\nv_lshlrev_b32 v3, 4, v3\ns_lshl_b32 s21, s20, 10")
    for r in range(128, 256, 4):
        A(f"s_mov_b32 s23, {r*4096}\nbuffer_load_dwordx4 a[{r}:{r+3}], v2, s[8:11], s23 offen\nbuffer_load_dwordx4 v[{r}:{r+3}], v2, s[8:11], s23 offen")
    for i in range(16):
        A(f"s_add_u32 m0, s21, {i*4096}\ns_mov_b32 s23, {i*4096}\nbuffer_load_dwordx4 v2, s[8:11], s23 offen lds")
    A("s_waitcnt vmcnt(0)")
    for r in range(16, 128): A(f"v_mov_b32 v{r}, 0")
    A("s_and_b32 s24, s2, 7\ns_lshl_b32 s24, s24, 19\ns_mov_b32 s25, 0\ns_add_u32 m0, s21, 65536")
    A("s_barrier\ns_memtime s[30:31]\ns_memrealtime s[32:33]")
    A(f"s_mov_b32 s26, 40\n.p2align 6\nL_loop_{name}:")
    n = 0
    for j in range(8):
        for i in range(8):
            acc = 16 + ((j * 8 + i) % 28) * 4
            for ks in range(2):
                a = 128 + (i * 2 + ks) * 4; b = 192 + (j * 2 + ks) * 4
                A(f"v_mfma_f32_16x16x32_bf16 v[{acc}:{acc+3}], {dst}[{a}:{a+3}], {dst}[{b}:{b+3}], v[{acc}:{acc+3}]")
                n += 1
                k = n // 4
                if n % 4 == 0:
                    r = 128 + ((k + 20) % 32) * 4
                    off = (k * 1024 * 5) % 65536
                    if rd == "b128": A(f"ds_read_b128 {dst}[{r}:{r+3}], v3 offset:{off}")
                    if rd == "b64": A(f"ds_read_b64 {dst}[{r}:{r+1}], v4 offset:{off}\nds_read_b64 {dst}[{r+2}:{r+3}], v4 offset:{off+512}")
                    if rd == "tr": A(f"ds_read_b64_tr_b16 {dst}[{r}:{r+1}], v4 offset:{off}\nds_read_b64_tr_b16 {dst}[{r+2}:{r+3}], v4 offset:{off+512}")
                if dma is not None and n % 16 == 2: A(f"s_add_u32 s25, s25, 4096\ns_and_b32 s25, s25, 0x3ffff\ns_add_u32 s27, s24, s25")
                if dma is not None and n % 16 == 6: A(f"buffer_load_dwordx4 v2, s[8:11], s27 offen {dma} lds")
    A(f"s_waitcnt vmcnt(8)\ns_sub_u32 s26, s26, 1\ns_cmp_lg_u32 s26, 0\ns_cbranch_scc1 L_loop_{name}")
    A("s_waitcnt vmcnt(0) lgkmcnt(0)\ns_memtime s[34:35]\ns_memrealtime s[36:37]\ns_waitcnt lgkmcnt(0)")
    A("s_sub_u32 s34, s34, s30\ns_sub_u32 s36, s36, s32")
    A("s_lshl_b32 s40, s2, 2\ns_add_u32 s40, s40, s20\ns_lshl_b32 s40, s40, 4\ns_add_u32 s40, s40, %d" % (idx*65536))
    A("v_mov_b32 v8, s34\nv_mov_b32 v9, s36\nv_mov_b32 v10, s38\nv_mov_b32 v11, s32\nv_mov_b32 v12, s40")
    A("s_mov_b64 exec, 1\nbuffer_store_dwordx4 v[8:11], v12, s[12:15], 0 offen\ns_waitcnt vmcnt(0)")
    A(f"L_end_{name}:\ns_endpgm")
    return "\n".join(o) + "\n" + kd(name)
V = [("none", None, "a", None), ("b128a", "b128", "a", None), ("b128v", "b128", "v", None), ("b64a", "b64", "a", None), ("tra", "tr", "a", None),
     ("dma", None, "a", ""), ("dmasc1", None, "a", "sc1"), ("dmant", None, "a", "nt")]
s = "".join(f"; @launch kernel={v[0]}_kernel grid=(256,1,1) block=(256,1,1) lds=160000\n" for v in V) + HDR
for i, v in enumerate(V): s += kernel(v[0] + "_kernel", i, *v[1:])
open("mb16.s", "w").write(s)
```
